```python
import torch

def _softmax(x, axis=-1):
    return torch.softmax(x, dim=axis)

def _gelu(x):
    return torch.nn.functional.gelu(x, approximate='tanh')

def _silu(x):
    return torch.nn.functional.silu(x)

def _sigmoid(x):
    return torch.sigmoid(x)

def _layernorm(x, axis=-1, eps=1e-05):
    m = x.mean(dim=axis, keepdim=True)
    v = x.var(dim=axis, keepdim=True, unbiased=False)
    return (x - m) / torch.sqrt(v + eps)

def _scatter_add(tgt, idx, src, axis=0):
    return tgt.clone().index_add_(axis, idx, src)

def _segment_sum(src, seg, n):
    out = torch.zeros((n,) + src.shape[1:], dtype=src.dtype)
    return out.index_add_(0, seg, src)

def _pad(x, pw):
    flat = tuple((v for pair in reversed(pw) for v in pair))
    return torch.nn.functional.pad(x, flat)
kernel_name = 'standalone__tree_speculative_verify_tree_attention_over_candidate_token_tree__decode'

def setup_inputs():

    _w = lambda a: (lambda t: t.to(torch.bfloat16) if t.is_floating_point() else t)(torch.as_tensor(a))
    B, Hq, Hkv, T, C, D = (8, 32, 8, 1, 4096, 128)
    tree_mask = torch.zeros((B, T, T), dtype=float)
    for b in range(B):
        parent = torch.zeros(T, dtype=torch.int64)
        for i in range(1, T):
            parent[i] = int(torch.randint(0, i, (1,)).item())
        for i in range(T):
            j = i
            tree_mask[b, i, j] = 1.0
            while j > 0:
                j = parent[j]
                tree_mask[b, i, j] = 1.0
    return {'q': _w((lambda *s: torch.randn(*s, dtype=torch.bfloat16) * 0.8)(B, Hq, T, D)), 'k_cache': _w((lambda *s: torch.randn(*s, dtype=torch.bfloat16) * 0.8)(B, Hkv, C, D)), 'v_cache': _w((lambda *s: torch.randn(*s, dtype=torch.bfloat16) * 0.05)(B, Hkv, C, D)), 'k_tree': _w((lambda *s: torch.randn(*s, dtype=torch.bfloat16) * 0.8)(B, Hkv, T, D)), 'v_tree': _w((lambda *s: torch.randn(*s, dtype=torch.bfloat16) * 0.05)(B, Hkv, T, D)), 'tree_mask': _w(tree_mask)}

def reference(q, k_cache, v_cache, k_tree, v_tree, tree_mask):
    B, Hq, T, D = q.shape
    Hkv, C = (k_cache.shape[1], k_cache.shape[2])
    rep = Hq // Hkv
    kc = (lambda x, n, axis: torch.repeat_interleave(x, n, dim=axis))(k_cache, rep, axis=1)
    vc = (lambda x, n, axis: torch.repeat_interleave(x, n, dim=axis))(v_cache, rep, axis=1)
    kt = (lambda x, n, axis: torch.repeat_interleave(x, n, dim=axis))(k_tree, rep, axis=1)
    vt = (lambda x, n, axis: torch.repeat_interleave(x, n, dim=axis))(v_tree, rep, axis=1)
    k = torch.concatenate([kc, kt], axis=2)
    v = torch.concatenate([vc, vt], axis=2)
    scale = D ** (-0.5)
    scores = torch.einsum('bhqd,bhkd->bhqk', q, k) * scale
    ctx_mask = torch.ones((B, 1, T, C), dtype=scores.dtype)
    tm = tree_mask[:, None, :, :].clone()
    full_mask = torch.concatenate([ctx_mask, tm], axis=-1)
    scores = scores + (1.0 - full_mask) * -1000000000.0
    p = _softmax(scores, axis=-1)
    return torch.einsum('bhqk,bhkd->bhqd', p, v)
```

```python
import sys, math

NAME = "standalone__tree_speculative_verify_tree_attention_over_candidate_token_tree__decode"

HEADER = """; Kernarg layout for this problem (72 bytes, ptrs only, base s[0:1]):
"""


class Asm:
    def __init__(self):
        self.lines = []

    def __call__(self, s=""):
        for l in s.split("\n"):
            self.lines.append(l if (l.endswith(":") or l.startswith(".") or l.startswith(";")) else "    " + l)

    def text(self):
        return "\n".join(self.lines) + "\n"


def vr(base, n=1):
    return f"v{base}" if n == 1 else f"v[{base}:{base + n - 1}]"


def sr(base, n=1):
    return f"s{base}" if n == 1 else f"s[{base}:{base + n - 1}]"


def gen(NW=8, NSLOT=4, nt=True, label=NAME + "_kernel"):
    KPW = 1024 // NW
    NT = KPW // 16
    SLOT = 4096
    RING = NSLOT * SLOT
    LDS = NW * RING
    pol = " nt" if nt else ""
    a = Asm()

    sQ, sK, sV, sKT, sVT, sM, sO, sD, sW = 24, 28, 32, 36, 40, 44, 48, 52, 56
    sWAVE, sGOFF, sLDS, sPAIR, sT0, sT1, sT2 = 60, 61, 62, 63, 64, 65, 66
    sSOFF = 67
    sC = 68
    sEX = 70
    vLANE = 1
    vT = 2
    vKO = 12
    vVO = 16
    vKA = 18
    vVA = 22
    vXT = 30
    vMSK = 31
    vQ = 32
    vVT = 48
    vFA = 52
    vFB = 68
    vO = 100
    vS = 132
    vP = vS + NT * 4
    vEND = vP + NT * 2
    vM, vL = vEND, vEND + 1
    vEND += 2
    NV = (vEND + 7) // 8 * 8
    assert NV <= 256 or NW <= 4

    a(HEADER.rstrip())
    a(f"; @launch grid=(256,1,1) block=({NW * 64},1,1) lds={LDS}")
    a('.amdgcn_target "amdgcn-amd-amdhsa--gfx950"')
    a(".text")
    a(f".globl {label}")
    a(".p2align 8")
    a(f".type {label},@function")
    a(f"{label}:")
    a("s_cmp_ge_u32 s2, 0x100")
    a("s_cbranch_scc1 L_end")
    a("s_load_dwordx16 s[4:19], s[0:1], 0")
    a("s_load_dwordx2 s[20:21], s[0:1], 64")
    a(f"v_lshrrev_b32 v{vT}, 6, v0")
    a(f"v_and_b32 v{vLANE}, 63, v0")
    a(f"v_lshrrev_b32 v{vT+1}, 4, v{vLANE}          ; g = lane>>4")
    a(f"v_readfirstlane_b32 s{sWAVE}, v{vT}")
    a(f"v_and_b32 v{vT+2}, 15, v{vLANE}              ; i = lane&15")
    a(f"v_lshlrev_b32 v{vT+3}, 8, v{vT+1}            ; g*256")
    for n in range(4):
        a(f"v_add_u32 v{vT+4}, {4 * n}, v{vT+1}")
        a(f"v_xor_b32 v{vT+4}, v{vT+4}, v{vT+2}")
        a(f"v_lshl_add_u32 v{vKO+n}, v{vT+4}, 4, v{vT+3}")
    a(f"s_lshl_b32 s{sGOFF}, s2, 18                  ; wg*256KiB")
    a(f"s_mul_i32 s{sT0}, s{sWAVE}, {KPW * 256}")
    a(f"s_add_u32 s{sGOFF}, s{sGOFF}, s{sT0}")
    a(f"s_mul_i32 s{sLDS}, s{sWAVE}, {RING}")
    a(f"s_lshr_b32 s{sPAIR}, s2, 2")
    a(f"s_mov_b32 s{sK+2}, 0x4000000")
    a(f"s_mov_b32 s{sK+3}, 0x20000")
    a(f"s_mov_b32 s{sV+2}, 0x4000000")
    a(f"s_mov_b32 s{sV+3}, 0x20000")
    a(f"s_mov_b32 s{sQ+2}, 0x10000")
    a(f"s_mov_b32 s{sQ+3}, 0x20000")
    a(f"s_lshl_b32 s{sT1}, s{sPAIR}, 10")
    a(f"v_lshlrev_b32 v{vT+5}, 8, v{vT+2}")
    a(f"v_lshl_add_u32 v{vT+5}, v{vT+1}, 4, v{vT+5}")
    a(f"v_add_u32 v{vT+5}, s{sT1}, v{vT+5}")
    a(f"v_mov_b32 v{vT+6}, 0x40000000")
    a(f"v_cmp_gt_u32 vcc, 4, v{vT+2}")
    a(f"s_mov_b32 m0, s{sLDS}")
    a(f"s_mov_b32 s{sSOFF}, s{sGOFF}")
    a(f"v_cndmask_b32 v{vT+5}, v{vT+6}, v{vT+5}, vcc     ; q offsets")
    a("s_waitcnt lgkmcnt(0)")
    a(f"s_mov_b32 s{sK}, s6")
    a(f"s_and_b32 s{sK+1}, s7, 0xffff")
    a(f"s_mov_b32 s{sQ}, s4")
    a(f"s_and_b32 s{sQ+1}, s5, 0xffff")

    def dma_tile(n):
        srd = sK if n < NT else sV
        for i in range(4):
            vo = (vKO + i) if n < NT else (vVO + (i & 1))
            off = f" offset:{i * 1024}" if i else ""
            a(f"buffer_load_dwordx4 v{vo}, s[{srd}:{srd+3}], s{sSOFF} offen{off}{pol} lds")

    def set_tile(n):
        slot = n % NSLOT
        t = n if n < NT else n - NT
        a(f"s_add_u32 s{sSOFF}, s{sGOFF}, {t * SLOT}")
        a(f"s_add_u32 m0, s{sLDS}, {slot * SLOT}")

    dma_tile(0)
    for j in range(4):
        off = f" offset:{j * 64}" if j else ""
        a(f"buffer_load_dwordx4 v[{vQ+4*j}:{vQ+4*j+3}], v{vT+5}, s[{sQ}:{sQ+3}], 0 offen{off}")
    a(f"v_lshlrev_b32 v{vT+4}, 1, v{vT+1}")
    a(f"v_xor_b32 v{vT+7}, v{vT+4}, v{vT+2}")
    a(f"v_lshl_add_u32 v{vVO}, v{vT+7}, 4, v{vT+3}")
    a(f"v_xor_b32 v{vT+7}, 8, v{vT+7}")
    a(f"v_lshl_add_u32 v{vVO+1}, v{vT+7}, 4, v{vT+3}")
    a(f"s_mov_b32 s{sV}, s8")
    a(f"s_and_b32 s{sV+1}, s9, 0xffff")
    for n in range(1, NSLOT):
        set_tile(n)
        a("s_nop 0")
        dma_tile(n)
    n_issued = NSLOT
    for srd, lo, size in ((sKT, 10, 0x4000), (sVT, 12, 0x4000), (sM, 14, 16), (sO, 16, 0x10000),
                          (sD, 18, 256), (sW, 20, 0x100000)):
        a(f"s_mov_b32 s{srd}, s{lo}")
        a(f"s_and_b32 s{srd+1}, s{lo+1}, 0xffff")
        a(f"s_mov_b32 s{srd+2}, {hex(size)}")
        a(f"s_mov_b32 s{srd+3}, 0x20000")
    c = (128 ** -0.5) * math.log2(math.e)
    import struct
    cbits = struct.unpack("<I", struct.pack("<f", c))[0]
    a(f"s_mov_b32 s{sC}, {hex(cbits)}")

    a(f"v_lshlrev_b32 v{vT+8}, 8, v{vT+2}")
    a(f"v_add_u32 v{vT+8}, s{sLDS}, v{vT+8}            ; lds + i*256")
    for j in range(4):
        a(f"v_add_u32 v{vT+4}, {4 * j}, v{vT+1}")
        a(f"v_xor_b32 v{vT+4}, v{vT+4}, v{vT+2}")
        a(f"v_lshl_add_u32 v{vKA+j}, v{vT+4}, 4, v{vT+8}")
    a(f"v_lshrrev_b32 v{vT+4}, 2, v{vT+2}")
    a(f"v_lshl_add_u32 v{vT+4}, v{vT+1}, 2, v{vT+4}     ; r")
    a(f"v_lshlrev_b32 v{vT+7}, 8, v{vT+4}")
    a(f"v_add_u32 v{vT+7}, s{sLDS}, v{vT+7}            ; lds + r*256")
    a(f"v_and_b32 v{vT+8}, 3, v{vT+2}")
    a(f"v_lshl_add_u32 v{vT+7}, v{vT+8}, 3, v{vT+7}     ; + (i&3)*8")
    a(f"v_and_b32 v{vT+4}, 7, v{vT+4}                   ; r&7")
    for db in range(8):
        a(f"v_xor_b32 v{vT+8}, {db}, v{vT+4}")
        a(f"v_lshl_add_u32 v{vVA+db}, v{vT+8}, 5, v{vT+7}")

    a(f"s_cmp_lg_u32 s{sWAVE}, 0")
    a("s_cbranch_scc1 L_notree")
    a(f"s_lshl_b32 s{sT1}, s{sPAIR}, 8")
    a(f"v_lshlrev_b32 v{vT+4}, 4, v{vT+1}")
    a(f"v_add_u32 v{vT+4}, s{sT1}, v{vT+4}")
    a(f"v_cmp_eq_u32 vcc, 0, v{vT+2}")
    a(f"v_lshlrev_b32 v{vT+7}, 4, v{vT+2}")
    a(f"v_add_u32 v{vT+7}, s{sT1}, v{vT+7}")
    a(f"v_cndmask_b32 v{vT+4}, v{vT+6}, v{vT+4}, vcc")
    a(f"s_lshr_b32 s{sT2}, s{sPAIR}, 3")
    a(f"s_lshl_b32 s{sT2}, s{sT2}, 1")
    a(f"v_mov_b32 v{vT+8}, s{sT2}")
    for j in range(4):
        off = f" offset:{j * 64}" if j else ""
        a(f"buffer_load_dwordx4 v[{vFB+4*j}:{vFB+4*j+3}], v{vT+4}, s[{sKT}:{sKT+3}], 0 offen{off}")
    a(f"buffer_load_dwordx4 v[{vVT}:{vVT+3}], v{vT+7}, s[{sVT}:{sVT+3}], 0 offen")
    a(f"buffer_load_ushort v{vMSK}, v{vT+8}, s[{sM}:{sM+3}], 0 offen")
    a("s_waitcnt vmcnt(0)")
    for j in range(4):
        cin = "0" if j == 0 else f"v[{vFA}:{vFA+3}]"
        a(f"v_mfma_f32_16x16x32_bf16 v[{vFA}:{vFA+3}], v[{vFB+4*j}:{vFB+4*j+3}], v[{vQ+4*j}:{vQ+4*j+3}], {cin}")
    pen = struct.unpack("<I", struct.pack("<f", -1e9 * math.log2(math.e)))[0]
    a(f"v_lshlrev_b32 v{vMSK}, 16, v{vMSK}")
    a(f"v_sub_f32 v{vMSK}, 1.0, v{vMSK}")
    a(f"v_mul_f32 v{vMSK}, {hex(pen)}, v{vMSK}")
    a(f"v_lshrrev_b32 v{vT+4}, 2, v{vLANE}")
    a(f"v_and_b32 v{vT+4}, 12, v{vT+4}")
    a("s_nop 4")
    a(f"ds_bpermute_b32 v{vXT}, v{vT+4}, v{vFA}")
    a("s_waitcnt lgkmcnt(0)")
    a(f"v_fma_f32 v{vXT}, v{vXT}, s{sC}, v{vMSK}")
    a("L_notree:")

    for t in range(NT):
        slot = t % NSLOT
        inflight_after = min(2 * NT, n_issued) - (t + 1)
        a(f"s_waitcnt vmcnt({4 * inflight_after})")
        for j in range(4):
            a(f"ds_read_b128 v[{vFA+4*j}:{vFA+4*j+3}], v{vKA+j} offset:{slot * SLOT}")
        if n_issued < 2 * NT:
            set_tile(n_issued)
        a("s_waitcnt lgkmcnt(0)")
        if n_issued < 2 * NT:
            dma_tile(n_issued)
            n_issued += 1
        for j in range(4):
            cin = "0" if j == 0 else f"v[{vS+4*t}:{vS+4*t+3}]"
            a(f"v_mfma_f32_16x16x32_bf16 v[{vS+4*t}:{vS+4*t+3}], v[{vFA+4*j}:{vFA+4*j+3}], v[{vQ+4*j}:{vQ+4*j+3}], {cin}")

    for k in range(32):
        a(f"v_mov_b32 v{vO+k}, 0")
    n = NT * 4
    a(f"v_max3_f32 v{vM}, v{vS}, v{vS+1}, v{vS+2}")
    k = 3
    while k + 1 < n:
        a(f"v_max3_f32 v{vM}, v{vM}, v{vS+k}, v{vS+k+1}")
        k += 2
    if k < n:
        a(f"v_max_f32 v{vM}, v{vM}, v{vS+k}")
    a(f"v_mov_b32 v{vT}, v{vM}")
    a("s_nop 1")
    a(f"v_permlane16_swap_b32 v{vM}, v{vT}")
    a(f"v_max_f32 v{vM}, v{vM}, v{vT}")
    a(f"v_mov_b32 v{vT}, v{vM}")
    a("s_nop 1")
    a(f"v_permlane32_swap_b32 v{vM}, v{vT}")
    a(f"v_max_f32 v{vM}, v{vM}, v{vT}")
    a(f"v_mul_f32 v{vM}, s{sC}, v{vM}")
    for k in range(n):
        a(f"v_fma_f32 v{vS+k}, v{vS+k}, s{sC}, -v{vM}")
    for k in range(n):
        a(f"v_exp_f32 v{vS+k}, v{vS+k}")
    a("s_nop 0")
    a(f"v_add_f32 v{vL}, v{vS}, v{vS+1}")
    for k in range(2, n):
        a(f"v_add_f32 v{vL}, v{vL}, v{vS+k}")
    for k in range(n // 2):
        a(f"v_cvt_pk_bf16_f32 v{vP+k}, v{vS+2*k}, v{vS+2*k+1}")
    a(f"v_mov_b32 v{vT}, v{vL}")
    a("s_nop 1")
    a(f"v_permlane16_swap_b32 v{vL}, v{vT}")
    a(f"v_add_f32 v{vL}, v{vL}, v{vT}")
    a(f"v_mov_b32 v{vT}, v{vL}")
    a("s_nop 1")
    a(f"v_permlane32_swap_b32 v{vL}, v{vT}")
    a(f"v_add_f32 v{vL}, v{vL}, v{vT}")

    for u in range(NT // 2):
        t1 = NT + 2 * u + 1
        inflight_after = n_issued - (t1 + 1)
        a(f"s_waitcnt vmcnt({4 * inflight_after})")
        for half in range(2):
            slot = (NT + 2 * u + half) % NSLOT
            for db in range(8):
                a(f"ds_read_b64_tr_b16 v[{vFB+4*db+2*half}:{vFB+4*db+2*half+1}], v{vVA+db} offset:{slot * SLOT}")
        todo = [x for x in (n_issued, n_issued + 1) if x < 2 * NT]
        a("s_waitcnt lgkmcnt(0)")
        for x in todo:
            set_tile(x)
            a("s_nop 0")
            dma_tile(x)
            n_issued += 1
        for db in range(8):
            a(f"v_mfma_f32_16x16x32_bf16 v[{vO+4*db}:{vO+4*db+3}], v[{vFB+4*db}:{vFB+4*db+3}], v[{vP+4*u}:{vP+4*u+3}], v[{vO+4*db}:{vO+4*db+3}]")

    a(f"v_and_b32 v{vT+2}, 15, v{vLANE}")
    a(f"v_lshrrev_b32 v{vT+1}, 4, v{vLANE}")
    a(f"v_and_b32 v{vT+3}, 1, v{vT+1}")
    a(f"v_lshlrev_b32 v{vT+3}, 10, v{vT+3}             ; (g&1)*1024")
    a(f"v_lshl_add_u32 v{vT+3}, v{vT+2}, 8, v{vT+3}     ; + h*256")
    a(f"v_lshrrev_b32 v{vT+4}, 1, v{vT+1}")
    a(f"v_lshl_add_u32 v{vT+3}, v{vT+4}, 4, v{vT+3}     ; + (g>>1)*16")
    a(f"v_add_u32 v{vT+3}, s{sLDS}, v{vT+3}")
    a(f"v_lshlrev_b32 v{vT+5}, 3, v{vLANE}")
    a(f"v_add_u32 v{vT+5}, s{sLDS}, v{vT+5}")
    a(f"v_cmp_gt_u32 vcc, 4, v{vT+2}")
    a(f"s_and_saveexec_b64 s[{sEX}:{sEX+1}], vcc")
    for db in range(8):
        a(f"ds_write_b128 v{vT+3}, v[{vO+4*db}:{vO+4*db+3}] offset:{db * 32}")
    a("s_mov_b64 exec, 0xf")
    a(f"ds_write_b64 v{vT+5}, v[{vM}:{vL}] offset:2048")
    a("s_mov_b64 exec, -1")
    a("s_waitcnt lgkmcnt(0)")
    a("s_barrier")
    a(f"s_cmp_lg_u32 s{sWAVE}, 0")
    a("s_cbranch_scc1 L_end")

    vR = vFB
    vOW = 52
    vML = vS
    a(f"v_lshlrev_b32 v{vT+3}, 4, v{vLANE}            ; lane*16")
    a(f"v_lshrrev_b32 v{vT+4}, 4, v{vLANE}")
    a(f"v_lshlrev_b32 v{vT+4}, 3, v{vT+4}             ; h*8")
    a(f"v_add_u32 v{vT+5}, 0x10000, v{vT+3}")
    a(f"v_add_u32 v{vT+6}, 0x10000, v{vT+4}")
    for w in range(NW):
        base = w * RING + 2048
        av = vT + 4 if base < 65536 else vT + 6
        a(f"ds_read_b64 v[{vML+2*w}:{vML+2*w+1}], v{av} offset:{base % 65536}")
    for w in range(NW):
        for half in range(2):
            base = w * RING + half * 1024
            av = vT + 3 if base < 65536 else vT + 5
            a(f"ds_read_b128 v[{vOW+8*w+4*half}:{vOW+8*w+4*half+3}], v{av} offset:{base % 65536}")
    a(f"s_waitcnt lgkmcnt({min(15, 2 * NW)})")
    vMM = vT + 7
    a("s_waitcnt lgkmcnt(0)")
    a(f"v_max3_f32 v{vMM}, v{vML}, v{vML+2}, v{vML+4}")
    k = 3
    while k + 1 < NW:
        a(f"v_max3_f32 v{vMM}, v{vMM}, v{vML+2*k}, v{vML+2*k+2}")
        k += 2
    if k < NW:
        a(f"v_max_f32 v{vMM}, v{vMM}, v{vML+2*k}")
    for w in range(NW):
        a(f"v_sub_f32 v{vML+2*w}, v{vML+2*w}, v{vMM}")
    for w in range(NW):
        a(f"v_exp_f32 v{vML+2*w}, v{vML+2*w}")
    vRES = vML + 2 * NW
    vRES = (vRES + 3) // 4 * 4
    vRM, vRL = vRES + 8, vRES + 9
    a("s_nop 0")
    a(f"v_mul_f32 v{vRL}, v{vML}, v{vML+1}")
    for w in range(1, NW):
        a(f"v_fmac_f32 v{vRL}, v{vML+2*w}, v{vML+2*w+1}")
    for e in range(8):
        a(f"v_mul_f32 v{vRES+e}, v{vML}, v{vOW+e}")
    for w in range(1, NW):
        for e in range(8):
            a(f"v_fmac_f32 v{vRES+e}, v{vML+2*w}, v{vOW+8*w+e}")
    a(f"v_mov_b32 v{vRM}, v{vMM}")
    a(f"s_lshl_b32 s{sT0}, s2, 12")
    a(f"v_lshlrev_b32 v{vT+5}, 3, v{vLANE}")
    a(f"buffer_store_dwordx4 v[{vRES}:{vRES+3}], v{vT+3}, s[{sW}:{sW+3}], s{sT0} offen sc1")
    a(f"buffer_store_dwordx4 v[{vRES+4}:{vRES+7}], v{vT+3}, s[{sW}:{sW+3}], s{sT0} offen offset:1024 sc1")
    a(f"buffer_store_dwordx2 v[{vRM}:{vRL}], v{vT+5}, s[{sW}:{sW+3}], s{sT0} offen offset:2048 sc1")
    a(f"s_lshl_b32 s{sT1}, s{sPAIR}, 2")
    a(f"v_mov_b32 v{vT+6}, s{sT1}")
    a(f"v_mov_b32 v{vT+7}, 1")
    a("s_waitcnt vmcnt(0)")
    a("s_mov_b64 exec, 1")
    a(f"buffer_atomic_add v{vT+7}, v{vT+6}, s[{sD}:{sD+3}], 0 offen sc0")
    a("s_waitcnt vmcnt(0)")
    a(f"v_readfirstlane_b32 s{sT2}, v{vT+7}")
    a("s_mov_b64 exec, -1")
    a(f"s_cmp_lg_u32 s{sT2}, 3")
    a("s_cbranch_scc1 L_end")
    vG = vOW
    vGM = vG + 32
    a(f"s_lshl_b32 s{sT0}, s{sPAIR}, 14")
    for s in range(4):
        a(f"s_add_u32 s{sT1}, s{sT0}, {s * 4096}")
        a(f"buffer_load_dwordx2 v[{vGM+2*s}:{vGM+2*s+1}], v{vT+5}, s[{sW}:{sW+3}], s{sT1} offen offset:2048 sc1")
        a(f"buffer_load_dwordx4 v[{vG+8*s}:{vG+8*s+3}], v{vT+3}, s[{sW}:{sW+3}], s{sT1} offen sc1")
        a(f"buffer_load_dwordx4 v[{vG+8*s+4}:{vG+8*s+7}], v{vT+3}, s[{sW}:{sW+3}], s{sT1} offen offset:1024 sc1")
    vU = vGM + 8
    for k in range(4):
        a(f"v_lshlrev_b32 v{vU+2*k}, 16, v{vVT+k}")
        a(f"v_and_b32 v{vU+2*k+1}, 0xffff0000, v{vVT+k}")
    a("s_waitcnt vmcnt(0)")
    a(f"v_max3_f32 v{vMM}, v{vGM}, v{vGM+2}, v{vGM+4}")
    a(f"v_max3_f32 v{vMM}, v{vMM}, v{vGM+6}, v{vXT}")
    for s in range(4):
        a(f"v_sub_f32 v{vGM+2*s}, v{vGM+2*s}, v{vMM}")
    a(f"v_sub_f32 v{vXT}, v{vXT}, v{vMM}")
    for s in range(4):
        a(f"v_exp_f32 v{vGM+2*s}, v{vGM+2*s}")
    a(f"v_exp_f32 v{vXT}, v{vXT}")
    a("s_nop 0")
    a(f"v_mov_b32 v{vRL}, v{vXT}")
    for s in range(4):
        a(f"v_fmac_f32 v{vRL}, v{vGM+2*s}, v{vGM+2*s+1}")
    for e in range(8):
        a(f"v_mul_f32 v{vRES+e}, v{vXT}, v{vU+e}")
    a(f"v_rcp_f32 v{vRL}, v{vRL}")
    for s in range(4):
        for e in range(8):
            a(f"v_fmac_f32 v{vRES+e}, v{vGM+2*s}, v{vG+8*s+e}")
    for e in range(8):
        a(f"v_mul_f32 v{vRES+e}, v{vRES+e}, v{vRL}")
    for k in range(4):
        a(f"v_cvt_pk_bf16_f32 v{vRES+k}, v{vRES+2*k}, v{vRES+2*k+1}")
    a(f"s_lshl_b32 s{sT0}, s{sPAIR}, 10")
    a(f"buffer_store_dwordx4 v[{vRES}:{vRES+3}], v{vT+3}, s[{sO}:{sO+3}], s{sT0} offen")
    a("L_end:")
    a("s_endpgm")
    a('.section .rodata,"a"')
    a(".p2align 6")
    a(f".amdhsa_kernel {label}")
    a(f"  .amdhsa_next_free_vgpr {NV}")
    a("  .amdhsa_next_free_sgpr 96")
    a(f"  .amdhsa_accum_offset {NV}")
    a("  .amdhsa_group_segment_fixed_size 0")
    a("  .amdhsa_kernarg_size 72")
    a("  .amdhsa_user_sgpr_count 2")
    a("  .amdhsa_user_sgpr_kernarg_segment_ptr 1")
    a("  .amdhsa_system_sgpr_workgroup_id_x 1")
    a("  .amdhsa_float_denorm_mode_32 3")
    a(".end_amdhsa_kernel")
    return a.text()


if __name__ == "__main__":
    import argparse
    ap = argparse.ArgumentParser()
    ap.add_argument("-o", default="/dev/stdout")
    ap.add_argument("--nw", type=int, default=8)
    ap.add_argument("--nslot", type=int, default=4)
    ap.add_argument("--nt", type=int, default=1)
    args = ap.parse_args()
    open(args.o, "w").write(gen(args.nw, args.nslot, bool(args.nt)))
```

```python
import sys, math

NAME = "standalone__tree_speculative_verify_tree_attention_over_candidate_token_tree__decode"

HEADER = """; Kernarg layout for this problem (72 bytes, ptrs only, base s[0:1]):
"""


class Asm:
    def __init__(self):
        self.lines = []

    def __call__(self, s=""):
        for l in s.split("\n"):
            self.lines.append(l if (l.endswith(":") or l.startswith(".") or l.startswith(";")) else "    " + l)

    def text(self):
        return "\n".join(self.lines) + "\n"


def vr(base, n=1):
    return f"v{base}" if n == 1 else f"v[{base}:{base + n - 1}]"


def sr(base, n=1):
    return f"s{base}" if n == 1 else f"s[{base}:{base + n - 1}]"


def gen(NW=8, NSLOT=4, nt=True, label=NAME + "_kernel", stamp=False, amp=None, ampf=10):
    KPW = 1024 // NW
    NT = KPW // 16
    SLOT = 4096
    RING = NSLOT * SLOT
    LDS = NW * RING
    pol = " nt" if nt else ""
    a = Asm()
    diag = stamp or amp is not None
    sST = 72

    def st(i):
        if diag:
            a(f"s_memrealtime s[{sST+2*i}:{sST+2*i+1}]")

    sQ, sK, sV, sKT, sVT, sM, sO, sD, sW = 24, 28, 32, 36, 40, 44, 48, 52, 56
    sWAVE, sGOFF, sLDS, sPAIR, sT0, sT1, sT2 = 60, 61, 62, 63, 64, 65, 66
    sSOFF = 67
    sC = 68
    sEX = 70
    vLANE = 1
    vT = 2
    vKO = 12
    vVO = 16
    vKA = 18
    vVA = 22
    vXT = 30
    vMSK = 31
    vQ = 32
    vVT = 48
    vFA = 52
    vFB = 68
    vO = 100
    vS = 132
    vP = vS + NT * 4
    vEND = vP + NT * 2
    vM, vL = vEND, vEND + 1
    vEND += 2
    NV = (vEND + 7) // 8 * 8
    assert NV <= 256 or NW <= 4

    a(HEADER.rstrip())
    a(f"; @launch grid=(256,1,1) block=({NW * 64},1,1) lds={LDS}")
    a('.amdgcn_target "amdgcn-amd-amdhsa--gfx950"')
    a(".text")
    a(f".globl {label}")
    a(".p2align 8")
    a(f".type {label},@function")
    a(f"{label}:")
    a("s_cmp_ge_u32 s2, 0x100")
    a("s_cbranch_scc1 L_end")
    st(0)
    a("s_load_dwordx16 s[4:19], s[0:1], 0")
    a("s_load_dwordx2 s[20:21], s[0:1], 64")
    a(f"v_lshrrev_b32 v{vT}, 6, v0")
    a(f"v_and_b32 v{vLANE}, 63, v0")
    a(f"v_lshrrev_b32 v{vT+1}, 4, v{vLANE}          ; g = lane>>4")
    a(f"v_readfirstlane_b32 s{sWAVE}, v{vT}")
    a(f"v_and_b32 v{vT+2}, 15, v{vLANE}              ; i = lane&15")
    a(f"v_lshlrev_b32 v{vT+3}, 8, v{vT+1}            ; g*256")
    for n in range(4):
        a(f"v_add_u32 v{vT+4}, {4 * n}, v{vT+1}")
        a(f"v_xor_b32 v{vT+4}, v{vT+4}, v{vT+2}")
        a(f"v_lshl_add_u32 v{vKO+n}, v{vT+4}, 4, v{vT+3}")
    a(f"s_lshl_b32 s{sGOFF}, s2, 18                  ; wg*256KiB")
    a(f"s_mul_i32 s{sT0}, s{sWAVE}, {KPW * 256}")
    a(f"s_add_u32 s{sGOFF}, s{sGOFF}, s{sT0}")
    a(f"s_mul_i32 s{sLDS}, s{sWAVE}, {RING}")
    a(f"s_lshr_b32 s{sPAIR}, s2, 2")
    a(f"s_mov_b32 s{sK+2}, 0x4000000")
    a(f"s_mov_b32 s{sK+3}, 0x20000")
    a(f"s_mov_b32 s{sV+2}, 0x4000000")
    a(f"s_mov_b32 s{sV+3}, 0x20000")
    a(f"s_mov_b32 s{sQ+2}, 0x10000")
    a(f"s_mov_b32 s{sQ+3}, 0x20000")
    a(f"s_lshl_b32 s{sT1}, s{sPAIR}, 10")
    a(f"v_lshlrev_b32 v{vT+5}, 8, v{vT+2}")
    a(f"v_lshl_add_u32 v{vT+5}, v{vT+1}, 4, v{vT+5}")
    a(f"v_add_u32 v{vT+5}, s{sT1}, v{vT+5}")
    a(f"v_mov_b32 v{vT+6}, 0x40000000")
    a(f"v_cmp_gt_u32 vcc, 4, v{vT+2}")
    a(f"s_mov_b32 m0, s{sLDS}")
    a(f"s_mov_b32 s{sSOFF}, s{sGOFF}")
    a(f"v_cndmask_b32 v{vT+5}, v{vT+6}, v{vT+5}, vcc     ; q offsets")
    a("s_waitcnt lgkmcnt(0)")
    st(1)
    a(f"s_mov_b32 s{sK}, s6")
    a(f"s_and_b32 s{sK+1}, s7, 0xffff")
    a(f"s_mov_b32 s{sQ}, s4")
    a(f"s_and_b32 s{sQ+1}, s5, 0xffff")

    def dma_tile(n):
        srd = sK if n < NT else sV
        for i in range(4):
            vo = (vKO + i) if n < NT else (vVO + (i & 1))
            off = f" offset:{i * 1024}" if i else ""
            a(f"buffer_load_dwordx4 v{vo}, s[{srd}:{srd+3}], s{sSOFF} offen{off}{pol} lds")

    def set_tile(n):
        slot = n % NSLOT
        t = n if n < NT else n - NT
        a(f"s_add_u32 s{sSOFF}, s{sGOFF}, {t * SLOT}")
        a(f"s_add_u32 m0, s{sLDS}, {slot * SLOT}")

    dma_tile(0)
    for j in range(4):
        off = f" offset:{j * 64}" if j else ""
        a(f"buffer_load_dwordx4 v[{vQ+4*j}:{vQ+4*j+3}], v{vT+5}, s[{sQ}:{sQ+3}], 0 offen{off}")
    a(f"v_lshlrev_b32 v{vT+4}, 1, v{vT+1}")
    a(f"v_xor_b32 v{vT+7}, v{vT+4}, v{vT+2}")
    a(f"v_lshl_add_u32 v{vVO}, v{vT+7}, 4, v{vT+3}")
    a(f"v_xor_b32 v{vT+7}, 8, v{vT+7}")
    a(f"v_lshl_add_u32 v{vVO+1}, v{vT+7}, 4, v{vT+3}")
    a(f"s_mov_b32 s{sV}, s8")
    a(f"s_and_b32 s{sV+1}, s9, 0xffff")
    for n in range(1, NSLOT):
        set_tile(n)
        a("s_nop 0")
        dma_tile(n)
    n_issued = NSLOT
    for srd, lo, size in ((sKT, 10, 0x4000), (sVT, 12, 0x4000), (sM, 14, 16), (sO, 16, 0x10000),
                          (sD, 18, 256), (sW, 20, 0x1000000 if diag else 0x100000)):
        a(f"s_mov_b32 s{srd}, s{lo}")
        a(f"s_and_b32 s{srd+1}, s{lo+1}, 0xffff")
        a(f"s_mov_b32 s{srd+2}, {hex(size)}")
        a(f"s_mov_b32 s{srd+3}, 0x20000")
    c = (128 ** -0.5) * math.log2(math.e)
    import struct
    cbits = struct.unpack("<I", struct.pack("<f", c))[0]
    a(f"s_mov_b32 s{sC}, {hex(cbits)}")

    a(f"v_lshlrev_b32 v{vT+8}, 8, v{vT+2}")
    a(f"v_add_u32 v{vT+8}, s{sLDS}, v{vT+8}            ; lds + i*256")
    for j in range(4):
        a(f"v_add_u32 v{vT+4}, {4 * j}, v{vT+1}")
        a(f"v_xor_b32 v{vT+4}, v{vT+4}, v{vT+2}")
        a(f"v_lshl_add_u32 v{vKA+j}, v{vT+4}, 4, v{vT+8}")
    a(f"v_lshrrev_b32 v{vT+4}, 2, v{vT+2}")
    a(f"v_lshl_add_u32 v{vT+4}, v{vT+1}, 2, v{vT+4}     ; r")
    a(f"v_lshlrev_b32 v{vT+7}, 8, v{vT+4}")
    a(f"v_add_u32 v{vT+7}, s{sLDS}, v{vT+7}            ; lds + r*256")
    a(f"v_and_b32 v{vT+8}, 3, v{vT+2}")
    a(f"v_lshl_add_u32 v{vT+7}, v{vT+8}, 3, v{vT+7}     ; + (i&3)*8")
    a(f"v_and_b32 v{vT+4}, 7, v{vT+4}                   ; r&7")
    for db in range(8):
        a(f"v_xor_b32 v{vT+8}, {db}, v{vT+4}")
        a(f"v_lshl_add_u32 v{vVA+db}, v{vT+8}, 5, v{vT+7}")

    a(f"s_cmp_lg_u32 s{sWAVE}, 0")
    a("s_cbranch_scc1 L_notree")
    a(f"s_lshl_b32 s{sT1}, s{sPAIR}, 8")
    a(f"v_lshlrev_b32 v{vT+4}, 4, v{vT+1}")
    a(f"v_add_u32 v{vT+4}, s{sT1}, v{vT+4}")
    a(f"v_cmp_eq_u32 vcc, 0, v{vT+2}")
    a(f"v_lshlrev_b32 v{vT+7}, 4, v{vT+2}")
    a(f"v_add_u32 v{vT+7}, s{sT1}, v{vT+7}")
    a(f"v_cndmask_b32 v{vT+4}, v{vT+6}, v{vT+4}, vcc")
    a(f"s_lshr_b32 s{sT2}, s{sPAIR}, 3")
    a(f"s_lshl_b32 s{sT2}, s{sT2}, 1")
    a(f"v_mov_b32 v{vT+8}, s{sT2}")
    for j in range(4):
        off = f" offset:{j * 64}" if j else ""
        a(f"buffer_load_dwordx4 v[{vFB+4*j}:{vFB+4*j+3}], v{vT+4}, s[{sKT}:{sKT+3}], 0 offen{off}")
    a(f"buffer_load_dwordx4 v[{vVT}:{vVT+3}], v{vT+7}, s[{sVT}:{sVT+3}], 0 offen")
    a(f"buffer_load_ushort v{vMSK}, v{vT+8}, s[{sM}:{sM+3}], 0 offen")
    a("s_waitcnt vmcnt(0)")
    for j in range(4):
        cin = "0" if j == 0 else f"v[{vFA}:{vFA+3}]"
        a(f"v_mfma_f32_16x16x32_bf16 v[{vFA}:{vFA+3}], v[{vFB+4*j}:{vFB+4*j+3}], v[{vQ+4*j}:{vQ+4*j+3}], {cin}")
    pen = struct.unpack("<I", struct.pack("<f", -1e9 * math.log2(math.e)))[0]
    a(f"v_lshlrev_b32 v{vMSK}, 16, v{vMSK}")
    a(f"v_sub_f32 v{vMSK}, 1.0, v{vMSK}")
    a(f"v_mul_f32 v{vMSK}, {hex(pen)}, v{vMSK}")
    a(f"v_lshrrev_b32 v{vT+4}, 2, v{vLANE}")
    a(f"v_and_b32 v{vT+4}, 12, v{vT+4}")
    a("s_nop 4")
    a(f"ds_bpermute_b32 v{vXT}, v{vT+4}, v{vFA}")
    a("s_waitcnt lgkmcnt(0)")
    a(f"v_fma_f32 v{vXT}, v{vXT}, s{sC}, v{vMSK}")
    a("L_notree:")

    for t in range(NT):
        slot = t % NSLOT
        inflight_after = min(2 * NT, n_issued) - (t + 1)
        a(f"s_waitcnt vmcnt({4 * inflight_after})")
        if t == 0:
            st(2)
        for j in range(4):
            a(f"ds_read_b128 v[{vFA+4*j}:{vFA+4*j+3}], v{vKA+j} offset:{slot * SLOT}")
        if n_issued < 2 * NT:
            set_tile(n_issued)
        a("s_waitcnt lgkmcnt(0)")
        if n_issued < 2 * NT:
            dma_tile(n_issued)
            n_issued += 1
        for j in range(4):
            cin = "0" if j == 0 else f"v[{vS+4*t}:{vS+4*t+3}]"
            a(f"v_mfma_f32_16x16x32_bf16 v[{vS+4*t}:{vS+4*t+3}], v[{vFA+4*j}:{vFA+4*j+3}], v[{vQ+4*j}:{vQ+4*j+3}], {cin}")

    st(3)
    for k in range(32):
        a(f"v_mov_b32 v{vO+k}, 0")
    n = NT * 4
    a(f"v_max3_f32 v{vM}, v{vS}, v{vS+1}, v{vS+2}")
    k = 3
    while k + 1 < n:
        a(f"v_max3_f32 v{vM}, v{vM}, v{vS+k}, v{vS+k+1}")
        k += 2
    if k < n:
        a(f"v_max_f32 v{vM}, v{vM}, v{vS+k}")
    a(f"v_mov_b32 v{vT}, v{vM}")
    a("s_nop 1")
    a(f"v_permlane16_swap_b32 v{vM}, v{vT}")
    a(f"v_max_f32 v{vM}, v{vM}, v{vT}")
    a(f"v_mov_b32 v{vT}, v{vM}")
    a("s_nop 1")
    a(f"v_permlane32_swap_b32 v{vM}, v{vT}")
    a(f"v_max_f32 v{vM}, v{vM}, v{vT}")
    a(f"v_mul_f32 v{vM}, s{sC}, v{vM}")
    for k in range(n):
        a(f"v_fma_f32 v{vS+k}, v{vS+k}, s{sC}, -v{vM}")
    for k in range(n):
        a(f"v_exp_f32 v{vS+k}, v{vS+k}")
    a("s_nop 0")
    a(f"v_add_f32 v{vL}, v{vS}, v{vS+1}")
    for k in range(2, n):
        a(f"v_add_f32 v{vL}, v{vL}, v{vS+k}")
    for k in range(n // 2):
        a(f"v_cvt_pk_bf16_f32 v{vP+k}, v{vS+2*k}, v{vS+2*k+1}")
    a(f"v_mov_b32 v{vT}, v{vL}")
    a("s_nop 1")
    a(f"v_permlane16_swap_b32 v{vL}, v{vT}")
    a(f"v_add_f32 v{vL}, v{vL}, v{vT}")
    a(f"v_mov_b32 v{vT}, v{vL}")
    a("s_nop 1")
    a(f"v_permlane32_swap_b32 v{vL}, v{vT}")
    a(f"v_add_f32 v{vL}, v{vL}, v{vT}")

    for u in range(NT // 2):
        t1 = NT + 2 * u + 1
        inflight_after = n_issued - (t1 + 1)
        a(f"s_waitcnt vmcnt({4 * inflight_after})")
        for half in range(2):
            slot = (NT + 2 * u + half) % NSLOT
            for db in range(8):
                a(f"ds_read_b64_tr_b16 v[{vFB+4*db+2*half}:{vFB+4*db+2*half+1}], v{vVA+db} offset:{slot * SLOT}")
        todo = [x for x in (n_issued, n_issued + 1) if x < 2 * NT]
        a("s_waitcnt lgkmcnt(0)")
        for x in todo:
            set_tile(x)
            a("s_nop 0")
            dma_tile(x)
            n_issued += 1
        for db in range(8):
            a(f"v_mfma_f32_16x16x32_bf16 v[{vO+4*db}:{vO+4*db+3}], v[{vFB+4*db}:{vFB+4*db+3}], v[{vP+4*u}:{vP+4*u+3}], v[{vO+4*db}:{vO+4*db+3}]")

    st(4)
    a(f"v_and_b32 v{vT+2}, 15, v{vLANE}")
    a(f"v_lshrrev_b32 v{vT+1}, 4, v{vLANE}")
    a(f"v_and_b32 v{vT+3}, 1, v{vT+1}")
    a(f"v_lshlrev_b32 v{vT+3}, 10, v{vT+3}             ; (g&1)*1024")
    a(f"v_lshl_add_u32 v{vT+3}, v{vT+2}, 8, v{vT+3}     ; + h*256")
    a(f"v_lshrrev_b32 v{vT+4}, 1, v{vT+1}")
    a(f"v_lshl_add_u32 v{vT+3}, v{vT+4}, 4, v{vT+3}     ; + (g>>1)*16")
    a(f"v_add_u32 v{vT+3}, s{sLDS}, v{vT+3}")
    a(f"v_lshlrev_b32 v{vT+5}, 3, v{vLANE}")
    a(f"v_add_u32 v{vT+5}, s{sLDS}, v{vT+5}")
    a(f"v_cmp_gt_u32 vcc, 4, v{vT+2}")
    a(f"s_and_saveexec_b64 s[{sEX}:{sEX+1}], vcc")
    for db in range(8):
        a(f"ds_write_b128 v{vT+3}, v[{vO+4*db}:{vO+4*db+3}] offset:{db * 32}")
    a("s_mov_b64 exec, 0xf")
    a(f"ds_write_b64 v{vT+5}, v[{vM}:{vL}] offset:2048")
    a("s_mov_b64 exec, -1")
    a("s_waitcnt lgkmcnt(0)")
    a("s_barrier")
    st(5)
    a(f"s_cmp_lg_u32 s{sWAVE}, 0")
    a("s_cbranch_scc1 L_end")

    vR = vFB
    vOW = 52
    vML = vS
    a(f"v_lshlrev_b32 v{vT+3}, 4, v{vLANE}            ; lane*16")
    a(f"v_lshrrev_b32 v{vT+4}, 4, v{vLANE}")
    a(f"v_lshlrev_b32 v{vT+4}, 3, v{vT+4}             ; h*8")
    a(f"v_add_u32 v{vT+5}, 0x10000, v{vT+3}")
    a(f"v_add_u32 v{vT+6}, 0x10000, v{vT+4}")
    for w in range(NW):
        base = w * RING + 2048
        av = vT + 4 if base < 65536 else vT + 6
        a(f"ds_read_b64 v[{vML+2*w}:{vML+2*w+1}], v{av} offset:{base % 65536}")
    for w in range(NW):
        for half in range(2):
            base = w * RING + half * 1024
            av = vT + 3 if base < 65536 else vT + 5
            a(f"ds_read_b128 v[{vOW+8*w+4*half}:{vOW+8*w+4*half+3}], v{av} offset:{base % 65536}")
    a(f"s_waitcnt lgkmcnt({min(15, 2 * NW)})")
    vMM = vT + 7
    a("s_waitcnt lgkmcnt(0)")
    a(f"v_max3_f32 v{vMM}, v{vML}, v{vML+2}, v{vML+4}")
    k = 3
    while k + 1 < NW:
        a(f"v_max3_f32 v{vMM}, v{vMM}, v{vML+2*k}, v{vML+2*k+2}")
        k += 2
    if k < NW:
        a(f"v_max_f32 v{vMM}, v{vMM}, v{vML+2*k}")
    for w in range(NW):
        a(f"v_sub_f32 v{vML+2*w}, v{vML+2*w}, v{vMM}")
    for w in range(NW):
        a(f"v_exp_f32 v{vML+2*w}, v{vML+2*w}")
    vRES = vML + 2 * NW
    vRES = (vRES + 3) // 4 * 4
    vRM, vRL = vRES + 8, vRES + 9
    a("s_nop 0")
    a(f"v_mul_f32 v{vRL}, v{vML}, v{vML+1}")
    for w in range(1, NW):
        a(f"v_fmac_f32 v{vRL}, v{vML+2*w}, v{vML+2*w+1}")
    for e in range(8):
        a(f"v_mul_f32 v{vRES+e}, v{vML}, v{vOW+e}")
    for w in range(1, NW):
        for e in range(8):
            a(f"v_fmac_f32 v{vRES+e}, v{vML+2*w}, v{vOW+8*w+e}")
    a(f"v_mov_b32 v{vRM}, v{vMM}")
    a(f"s_lshl_b32 s{sT0}, s2, 12")
    a(f"v_lshlrev_b32 v{vT+5}, 3, v{vLANE}")
    a(f"buffer_store_dwordx4 v[{vRES}:{vRES+3}], v{vT+3}, s[{sW}:{sW+3}], s{sT0} offen sc1")
    a(f"buffer_store_dwordx4 v[{vRES+4}:{vRES+7}], v{vT+3}, s[{sW}:{sW+3}], s{sT0} offen offset:1024 sc1")
    a(f"buffer_store_dwordx2 v[{vRM}:{vRL}], v{vT+5}, s[{sW}:{sW+3}], s{sT0} offen offset:2048 sc1")
    a(f"s_lshl_b32 s{sT1}, s{sPAIR}, 2")
    a(f"v_mov_b32 v{vT+6}, s{sT1}")
    a(f"v_mov_b32 v{vT+7}, 1")
    a("s_waitcnt vmcnt(0)")
    st(6)
    a("s_mov_b64 exec, 1")
    a(f"buffer_atomic_add v{vT+7}, v{vT+6}, s[{sD}:{sD+3}], 0 offen sc0")
    a("s_waitcnt vmcnt(0)")
    a(f"v_readfirstlane_b32 s{sT2}, v{vT+7}")
    a("s_mov_b64 exec, -1")
    st(7)
    a(f"s_cmp_lg_u32 s{sT2}, 3")
    a("s_cbranch_scc1 L_fin" if diag else "s_cbranch_scc1 L_end")
    vG = vOW
    vGM = vG + 32
    a(f"s_lshl_b32 s{sT0}, s{sPAIR}, 14")
    for s in range(4):
        a(f"s_add_u32 s{sT1}, s{sT0}, {s * 4096}")
        a(f"buffer_load_dwordx2 v[{vGM+2*s}:{vGM+2*s+1}], v{vT+5}, s[{sW}:{sW+3}], s{sT1} offen offset:2048 sc1")
        a(f"buffer_load_dwordx4 v[{vG+8*s}:{vG+8*s+3}], v{vT+3}, s[{sW}:{sW+3}], s{sT1} offen sc1")
        a(f"buffer_load_dwordx4 v[{vG+8*s+4}:{vG+8*s+7}], v{vT+3}, s[{sW}:{sW+3}], s{sT1} offen offset:1024 sc1")
    vU = vGM + 8
    for k in range(4):
        a(f"v_lshlrev_b32 v{vU+2*k}, 16, v{vVT+k}")
        a(f"v_and_b32 v{vU+2*k+1}, 0xffff0000, v{vVT+k}")
    a("s_waitcnt vmcnt(0)")
    a(f"v_max3_f32 v{vMM}, v{vGM}, v{vGM+2}, v{vGM+4}")
    a(f"v_max3_f32 v{vMM}, v{vMM}, v{vGM+6}, v{vXT}")
    for s in range(4):
        a(f"v_sub_f32 v{vGM+2*s}, v{vGM+2*s}, v{vMM}")
    a(f"v_sub_f32 v{vXT}, v{vXT}, v{vMM}")
    for s in range(4):
        a(f"v_exp_f32 v{vGM+2*s}, v{vGM+2*s}")
    a(f"v_exp_f32 v{vXT}, v{vXT}")
    a("s_nop 0")
    a(f"v_mov_b32 v{vRL}, v{vXT}")
    for s in range(4):
        a(f"v_fmac_f32 v{vRL}, v{vGM+2*s}, v{vGM+2*s+1}")
    for e in range(8):
        a(f"v_mul_f32 v{vRES+e}, v{vXT}, v{vU+e}")
    a(f"v_rcp_f32 v{vRL}, v{vRL}")
    for s in range(4):
        for e in range(8):
            a(f"v_fmac_f32 v{vRES+e}, v{vGM+2*s}, v{vG+8*s+e}")
    for e in range(8):
        a(f"v_mul_f32 v{vRES+e}, v{vRES+e}, v{vRL}")
    for k in range(4):
        a(f"v_cvt_pk_bf16_f32 v{vRES+k}, v{vRES+2*k}, v{vRES+2*k+1}")
    a(f"s_lshl_b32 s{sT0}, s{sPAIR}, 10")
    a(f"buffer_store_dwordx4 v[{vRES}:{vRES+3}], v{vT+3}, s[{sO}:{sO+3}], s{sT0} offen")
    if diag:
        a("L_fin:")
        st(8)
        a("s_waitcnt lgkmcnt(0) vmcnt(0)")
        if stamp:
            for i in range(9):
                a(f"v_writelane_b32 v2, s{sST+2*i}, {i}")
            a(f"v_writelane_b32 v2, s{sT2}, 9")
            a(f"s_lshl_b32 s{sT0}, s2, 6")
            a(f"s_add_u32 s{sT0}, s{sT0}, 0x800000")
            a(f"v_lshlrev_b32 v3, 2, v{vLANE}")
            a("s_mov_b64 exec, 0x3ff")
            a(f"buffer_store_dword v2, v3, s[{sW}:{sW+3}], s{sT0} offen")
        if amp is not None:
            a(f"s_sub_u32 s{sT0}, s{sST+2*amp}, s{sST}")
            a(f"s_mul_i32 s{sT0}, s{sT0}, {ampf}")
            a(f"s_min_u32 s{sT0}, s{sT0}, 100000")
            a("L_spin:")
            a("s_memrealtime s[92:93]")
            a("s_waitcnt lgkmcnt(0)")
            a(f"s_sub_u32 s{sT1}, s92, s{sST+16}")
            a(f"s_cmp_lt_u32 s{sT1}, s{sT0}")
            a("s_cbranch_scc1 L_spin")
    a("L_end:")
    a("s_endpgm")
    a('.section .rodata,"a"')
    a(".p2align 6")
    a(f".amdhsa_kernel {label}")
    a(f"  .amdhsa_next_free_vgpr {NV}")
    a("  .amdhsa_next_free_sgpr 96")
    a(f"  .amdhsa_accum_offset {NV}")
    a("  .amdhsa_group_segment_fixed_size 0")
    a("  .amdhsa_kernarg_size 72")
    a("  .amdhsa_user_sgpr_count 2")
    a("  .amdhsa_user_sgpr_kernarg_segment_ptr 1")
    a("  .amdhsa_system_sgpr_workgroup_id_x 1")
    a("  .amdhsa_float_denorm_mode_32 3")
    a(".end_amdhsa_kernel")
    return a.text()


if __name__ == "__main__":
    import argparse
    ap = argparse.ArgumentParser()
    ap.add_argument("-o", default="/dev/stdout")
    ap.add_argument("--nw", type=int, default=8)
    ap.add_argument("--nslot", type=int, default=4)
    ap.add_argument("--nt", type=int, default=1)
    ap.add_argument("--stamp", type=int, default=0)
    ap.add_argument("--amp", type=int, default=None)
    ap.add_argument("--ampf", type=int, default=10)
    args = ap.parse_args()
    open(args.o, "w").write(gen(args.nw, args.nslot, bool(args.nt), stamp=bool(args.stamp), amp=args.amp, ampf=args.ampf))
```

```python
import math
import struct

NAME = "standalone__tree_speculative_verify_tree_attention_over_candidate_token_tree__decode"

HEADER = """; Kernarg layout for this problem (72 bytes, ptrs only, base s[0:1]):
"""


def f32(x):
    return hex(struct.unpack("<I", struct.pack("<f", x))[0])


class Asm:
    def __init__(self):
        self.lines = []
        self.vmq = []

    def __call__(self, s=""):
        for l in s.split("\n"):
            self.lines.append(l if (l.endswith(":") or l.startswith(".") or l.startswith(";")) else "    " + l)

    def vm(self, s, tag):
        self(s)
        self.vmq.append(tag)

    def wait_vm(self, tag):
        if tag not in self.vmq:
            return
        idx = max(i for i, t in enumerate(self.vmq) if t == tag)
        n = len(self.vmq) - 1 - idx
        assert n < 64
        self(f"s_waitcnt vmcnt({n})")
        self.vmq = self.vmq[idx + 1:]

    def text(self):
        return "\n".join(self.lines) + "\n"


def gen(NSLOT=2, nt=True, xcd=True, label=NAME + "_kernel", stamp=False, amp=None, ampf=10,
        fast=1, warm=0, sleep=0, prio=0, exp=0, prog1=8, prog2=6, npoll=2):
    NW = 4
    NT = 16
    SLOT = 4096
    RING = NSLOT * SLOT
    XB = NW * RING
    X_XT, X_NON, X_PROG, X_XCC, X_ML, X_VT = 0, 4, 8, 16, 64, 256
    LDS = XB + 768
    XOFF = 0x100000
    MAGIC = 0x5eed1e57
    STEP = NW * SLOT
    pol = " nt" if nt else ""
    a = Asm()
    diag = stamp or amp is not None
    sST = 72

    def st(i):
        if diag:
            a(f"s_memrealtime s[{sST+2*i}:{sST+2*i+1}]")

    sSPL, sCNT = 22, 23
    sQ, sK, sV, sVT, sO, sW = 24, 28, 32, 36, 40, 44
    sKT, sM, sD = 48, 52, 56
    sWAVE, sGOFF, sLDS, sPAIR, sT0, sT1, sT2 = 60, 61, 62, 63, 64, 65, 66
    sSOFF = 67
    sC = 68
    sCH = 69
    sEX = 92 if not diag else 94
    sXCC = 91
    sMSG = 90
    sDIE = 71
    vLANE = 1
    vT = 2
    vKO = 12
    vVO = 16
    vKA = 18
    vVA = 22
    vP2 = 24
    vVT = 26
    vXCC = 28
    vXT = 30
    vNON = 31
    vQ = 32
    vFA = 52
    vFB = 68
    vP = 84
    vM, vL = 86, 87
    vO = 88
    vS = 96
    NV = vS + NT * 4

    def srd(reg, lo, size):
        a(f"s_mov_b32 s{reg}, s{lo}")
        a(f"s_and_b32 s{reg+1}, s{lo+1}, 0xffff")
        a(f"s_mov_b32 s{reg+2}, {hex(size)}")
        a(f"s_mov_b32 s{reg+3}, 0x20000")

    WS_SIZE = 0x1000000 if diag else XOFF + 256 * 128

    a(HEADER.rstrip())
    a(f"; @launch grid=(256,1,1) block=({(NW + 1) * 64},1,1) lds={LDS}")
    a('.amdgcn_target "amdgcn-amd-amdhsa--gfx950"')
    a(".text")
    a(f".globl {label}")
    a(".p2align 8")
    a(f".type {label},@function")
    a(f"{label}:")
    a("s_cmp_ge_u32 s2, 0x100")
    a("s_cbranch_scc1 L_end")
    st(0)
    a("s_load_dwordx16 s[4:19], s[0:1], 0")
    a(f"v_lshrrev_b32 v{vT}, 6, v0")
    a(f"v_and_b32 v{vLANE}, 63, v0")
    a(f"v_bfe_u32 v{vT+1}, v0, 4, 2                  ; g = (lane>>4)&3")
    a(f"v_readfirstlane_b32 s{sWAVE}, v{vT}")
    a(f"v_and_b32 v{vT+2}, 15, v0                    ; i = lane&15")
    if xcd:
        a(f"s_and_b32 s{sCH}, s2, 7")
        a(f"s_lshl_b32 s{sCH}, s{sCH}, 5")
        a(f"s_lshr_b32 s{sT0}, s2, 3")
        a(f"s_add_u32 s{sCH}, s{sCH}, s{sT0}")
    else:
        a(f"s_mov_b32 s{sCH}, s2")
    a(f"s_lshr_b32 s{sPAIR}, s{sCH}, 2")
    a(f"s_and_b32 s{sSPL}, s{sCH}, 3")
    a(f"s_cmp_eq_u32 s{sWAVE}, {NW}")
    a("s_cbranch_scc1 L_helper")
    a(f"v_xor_b32 v{vT+4}, v{vT+1}, v{vT+2}")
    a(f"v_lshlrev_b32 v{vT+3}, 8, v{vT+1}            ; g*256")
    a(f"v_lshl_add_u32 v{vKO}, v{vT+4}, 4, v{vT+3}")
    a(f"s_lshl_b32 s{sGOFF}, s{sCH}, 18                ; chunk*256KiB")
    a(f"s_lshl_b32 s{sT0}, s{sWAVE}, 12")
    for n in range(1, 4):
        a(f"v_xor_b32 v{vKO+n}, {n * 64}, v{vKO}")
    a(f"s_add_u32 s{sGOFF}, s{sGOFF}, s{sT0}")
    a(f"s_mul_i32 s{sLDS}, s{sWAVE}, {RING}")
    a(f"s_mov_b32 s{sK+2}, 0x4000000")
    a(f"s_mov_b32 s{sK+3}, 0x20000")
    a(f"s_mov_b32 s{sQ+2}, 0x10000")
    a(f"s_mov_b32 s{sQ+3}, 0x20000")
    a(f"s_mov_b32 m0, s{sLDS}")
    a(f"s_mov_b32 s{sSOFF}, s{sGOFF}")
    a(f"s_lshl_b32 s{sT1}, s{sPAIR}, 10")
    a(f"v_lshlrev_b32 v{vT+5}, 8, v{vT+2}")
    a(f"v_cmp_gt_u32 vcc, 4, v{vT+2}")
    a(f"v_lshl_add_u32 v{vT+5}, v{vT+1}, 4, v{vT+5}")
    a(f"v_mov_b32 v{vT+6}, 0x40000000")
    a(f"v_add_u32 v{vT+5}, s{sT1}, v{vT+5}")
    a(f"v_cndmask_b32 v{vT+5}, v{vT+6}, v{vT+5}, vcc     ; q offsets")
    a("s_waitcnt lgkmcnt(0)")
    st(1)
    a(f"s_mov_b32 s{sK}, s6")
    a(f"s_and_b32 s{sK+1}, s7, 0xffff")

    def dma_tile(n):
        r = sK if n < NT else sV
        for i in range(4):
            vo = (vKO + i) if n < NT else vVO
            off = f" offset:{i * 1024}" if i else ""
            a.vm(f"buffer_load_dwordx4 v{vo}, s[{r}:{r+3}], s{sSOFF} offen{off}{pol} lds", f"tile{n}")

    def set_tile(n):
        slot = n % NSLOT
        t = n if n < NT else n - NT
        a(f"s_add_u32 s{sSOFF}, s{sGOFF}, {t * STEP}")
        a(f"s_add_u32 m0, s{sLDS}, {slot * SLOT}")

    dma_tile(0)
    a("s_load_dwordx2 s[20:21], s[0:1], 64")
    a(f"s_mov_b32 s{sQ}, s4")
    a(f"s_and_b32 s{sQ+1}, s5, 0xffff")
    for j in range(4):
        off = f" offset:{j * 64}" if j else ""
        a.vm(f"buffer_load_dwordx4 v[{vQ+4*j}:{vQ+4*j+3}], v{vT+5}, s[{sQ}:{sQ+3}], 0 offen{off}", "q")
    assert NSLOT <= NT
    for n in range(1, NSLOT):
        set_tile(n)
        a("s_nop 0")
        dma_tile(n)
    n_issued = NSLOT
    if prio:
        a(f"s_setprio {prio}")
    a(f"s_sub_u32 s{sT0}, s{sSPL}, s{sWAVE}")
    a(f"s_sub_u32 s{sT0}, s{sT0}, 1")
    a(f"s_and_b32 s{sT0}, s{sT0}, 3")
    a(f"s_lshl_b32 s{sT1}, s{sPAIR}, 2")
    a(f"s_add_u32 s{sT1}, s{sT1}, s{sWAVE}")
    a(f"s_lshl_b32 s{sT1}, s{sT1}, 2")
    a(f"s_add_u32 s{sT0}, s{sT0}, s{sT1}")
    a(f"s_lshl_b32 s{sT0}, s{sT0}, 10")
    a(f"s_lshl_b32 s{sT1}, s{sCH}, 12")
    a(f"s_cmp_eq_u32 s{sWAVE}, s{sSPL}")
    a(f"s_cselect_b32 s{sMSG}, s{sT1}, s{sT0}")
    srd(sV, 8, 0x4000000)
    srd(sO, 16, 0x10000)
    a(f"s_mov_b32 s{sC}, {f32((128 ** -0.5) * math.log2(math.e))}")
    a(f"s_getreg_b32 s{sXCC}, hwreg(HW_REG_XCC_ID, 0, 4)")
    a(f"v_lshlrev_b32 v{vT+4}, 2, v{vT+1}")
    a(f"v_xor_b32 v{vT+4}, v{vT+4}, v{vT+2}")
    a(f"v_lshl_add_u32 v{vVO}, v{vT+4}, 4, v{vT+3}")
    a(f"v_xor_b32 v{vT+4}, v{vT+1}, v{vT+2}")
    a(f"v_lshlrev_b32 v{vT+8}, 8, v{vT+2}")
    a(f"v_lshl_add_u32 v{vT+8}, v{vT+4}, 4, v{vT+8}")
    a(f"v_add_u32 v{vKA}, s{sLDS}, v{vT+8}")
    for j in range(1, 4):
        a(f"v_xor_b32 v{vKA+j}, {j * 64}, v{vKA}")
    a(f"v_lshrrev_b32 v{vT+4}, 2, v{vT+2}                 ; q")
    a(f"v_lshlrev_b32 v{vT+7}, 8, v{vT+4}")
    a(f"v_lshlrev_b32 v{vT+4}, 1, v{vT+4}")
    a(f"v_xor_b32 v{vT+4}, v{vT+4}, v{vT+1}")
    a(f"v_lshl_add_u32 v{vT+7}, v{vT+4}, 5, v{vT+7}")
    a(f"v_and_b32 v{vT+8}, 3, v{vT+2}")
    a(f"v_lshl_add_u32 v{vT+7}, v{vT+8}, 3, v{vT+7}")
    a(f"v_add_u32 v{vVA}, s{sLDS}, v{vT+7}")
    a(f"v_xor_b32 v{vVA+1}, 128, v{vVA}")
    for k in range(8):
        a(f"v_mov_b32 v{vO+k}, 0")

    def progress(val):
        a(f"v_mov_b32 v{vT+4}, {XB + X_PROG}")
        a(f"v_mov_b32 v{vT+5}, {hex(val)}")
        a(f"ds_write_b32 v{vT+4}, v{vT+5}")

    def max_in(t):
        if t == 0:
            a(f"v_max3_f32 v{vM}, v{vS}, v{vS+1}, v{vS+2}")
            a(f"v_max_f32 v{vM}, v{vM}, v{vS+3}")
        else:
            a(f"v_max3_f32 v{vM}, v{vM}, v{vS+4*t}, v{vS+4*t+1}")
            a(f"v_max3_f32 v{vM}, v{vM}, v{vS+4*t+2}, v{vS+4*t+3}")

    for t in range(NT):
        slot = t % NSLOT
        a.wait_vm("q" if t == 0 else f"tile{t}")
        if t == 0:
            st(2)
        for j in range(4):
            a(f"ds_read_b128 v[{vFA+4*j}:{vFA+4*j+3}], v{vKA+j} offset:{slot * SLOT}")
        set_tile(n_issued)
        if t > 0:
            a("s_nop 1")
            max_in(t - 1)
        a("s_waitcnt lgkmcnt(0)")
        dma_tile(n_issued)
        n_issued += 1
        for j in range(4):
            cin = "0" if j == 0 else f"v[{vS+4*t}:{vS+4*t+3}]"
            a(f"v_mfma_f32_16x16x32_bf16 v[{vS+4*t}:{vS+4*t+3}], v[{vFA+4*j}:{vFA+4*j+3}], v[{vQ+4*j}:{vQ+4*j+3}], {cin}")
        if t == prog1:
            progress(MAGIC)
    st(3)
    srd(sW, 20, WS_SIZE)
    a("s_nop 3")
    max_in(NT - 1)
    a(f"v_mov_b32 v{vT}, v{vM}")
    a("s_nop 1")
    a(f"v_permlane16_swap_b32 v{vM}, v{vT}")
    a(f"v_max_f32 v{vM}, v{vM}, v{vT}")
    a(f"v_mov_b32 v{vT}, v{vM}")
    a("s_nop 1")
    a(f"v_permlane32_swap_b32 v{vM}, v{vT}")
    a(f"v_max_f32 v{vM}, v{vM}, v{vT}")
    a(f"v_mul_f32 v{vM}, s{sC}, v{vM}")
    a(f"v_mov_b32 v{vL}, 0")

    pslot = (2 * NT) % NSLOT
    assert NSLOT >= 2
    vOW = 32
    vML = 52
    vR = 60
    vU = 64
    vG = 72

    def p_tile(t, dst):
        for k in range(4):
            a(f"v_fma_f32 v{vS+4*t+k}, v{vS+4*t+k}, s{sC}, -v{vM}")
        for k in range(4):
            a(f"v_exp_f32 v{vS+4*t+k}, v{vS+4*t+k}")
        a("s_nop 0")
        a(f"v_add_f32 v{vL}, v{vL}, v{vS+4*t}")
        a(f"v_cvt_pk_bf16_f32 v{dst}, v{vS+4*t}, v{vS+4*t+1}")
        a(f"v_add_f32 v{vL}, v{vL}, v{vS+4*t+1}")
        a(f"v_add_f32 v{vL}, v{vL}, v{vS+4*t+2}")
        a(f"v_cvt_pk_bf16_f32 v{dst+1}, v{vS+4*t+2}, v{vS+4*t+3}")
        a(f"v_add_f32 v{vL}, v{vL}, v{vS+4*t+3}")

    for t in range(NT):
        n = NT + t
        slot = n % NSLOT
        if t < NT - 1:
            p_tile(t, vP)
        if t == NT - 2:
            p_tile(NT - 1, vP2)
            a(f"v_mov_b32 v{vT}, v{vL}")
            a(f"v_lshlrev_b32 v{vT+5}, 3, v{vLANE}")
            a(f"s_lshl_b32 s{sT0}, s{sWAVE}, 5")
            a(f"v_permlane16_swap_b32 v{vL}, v{vT}")
            a(f"v_add_f32 v{vL}, v{vL}, v{vT}")
            a(f"v_mov_b32 v{vT}, v{vL}")
            a(f"v_add_u32 v{vT+5}, s{sT0}, v{vT+5}")
            a(f"s_lshl_b32 s{sT0}, s{sWAVE}, 3")
            a(f"v_permlane32_swap_b32 v{vL}, v{vT}")
            a(f"v_add_f32 v{vL}, v{vL}, v{vT}")
            a(f"v_mov_b32 v{vT+7}, s{sT0}                      ; h*8")
            a("s_mov_b64 exec, 0xf")
            a(f"ds_write_b64 v{vT+5}, v[{vM}:{vL}] offset:{XB + X_ML}")
            a("s_mov_b64 exec, -1")
            a(f"v_mov_b32 v{vT+8}, {XB}")
            a(f"v_lshlrev_b32 v{vT+9}, 2, v{vLANE}")
            a(f"v_add_u32 v{vT+9}, {XB + X_VT}, v{vT+9}")
            a("s_waitcnt lgkmcnt(0)")
            a("s_barrier")
            for w in range(NW):
                a(f"ds_read_b64 v[{vML+2*w}:{vML+2*w+1}], v{vT+7} offset:{XB + X_ML + 32 * w}")
            a(f"ds_read_b64 v[{vXT}:{vNON}], v{vT+8}")
            a(f"ds_read_b32 v{vXCC}, v{vT+7} offset:{XB + X_XCC}")
            a(f"ds_read2st64_b32 v[{vVT}:{vVT+1}], v{vT+9} offset0:0 offset1:1")
            a(f"v_lshlrev_b32 v{vT+6}, 2, v{vLANE}")
            a(f"v_add_u32 v{vT+3}, s{sLDS}, v{vT+6}")
            a(f"s_lshl_b32 s{sT0}, s{sWAVE}, 9")
            a(f"v_add_u32 v{vT+6}, s{sT0}, v{vT+6}             ; h*512 + lane*4")
            a(f"v_lshlrev_b32 v{vT+9}, 4, v{vLANE}             ; lane*16")
            a("s_waitcnt lgkmcnt(0)")
            a(f"v_max3_f32 v{vR+2}, v{vML}, v{vML+2}, v{vML+4}")
            a(f"v_readfirstlane_b32 s{sDIE}, v{vXCC}")
            a(f"v_max_f32 v{vR+2}, v{vR+2}, v{vML+6}")
            for w in range(NW):
                a(f"v_sub_f32 v{vML+2*w}, v{vML+2*w}, v{vR+2}")
            for w in range(NW):
                a(f"v_exp_f32 v{vML+2*w}, v{vML+2*w}")
            a(f"v_mov_b32 v{vR+3}, v{vNON}")
            a(f"v_mul_f32 v{vT+4}, v{vML}, v{vML+1}")
            for w in range(1, NW):
                a(f"v_fmac_f32 v{vT+4}, v{vML+2*w}, v{vML+2*w+1}")
            a(f"v_rcp_f32 v{vT+5}, v{vT+4}")
            a(f"v_log_f32 v{vT+4}, v{vT+4}")
            a("s_nop 0")
            for w in range(NW):
                a(f"v_mul_f32 v{vML+2*w}, v{vML+2*w}, v{vT+5}")
            a(f"v_add_f32 v{vR+2}, v{vR+2}, v{vT+4}")
            a(f"v_max_f32 v{vU+2}, v{vR+2}, v{vXT}")
        if t == prog2:
            progress(MAGIC + 1)
        if warm and t == NT - warm:
            assert prog2 < NT - warm < NT - 2
            progress(MAGIC + 2)
        a.wait_vm(f"tile{n}")
        for kq in range(4):
            for half in range(2):
                f = vFB + 4 * kq + 2 * half
                a(f"ds_read_b64_tr_b16 v[{f}:{f+1}], v{vVA+half} offset:{slot * SLOT + kq * 1024}")
        if n_issued < 2 * NT:
            set_tile(n_issued)
        p = vP2 if t == NT - 1 else vP

        def pv(kq):
            for half in range(2):
                f = vFB + 4 * kq + 2 * half
                o = vO + 4 * half
                a(f"v_mfma_f32_4x4x4_16b_bf16 v[{o}:{o+3}], v[{p}:{p+1}], v[{f}:{f+1}], v[{o}:{o+3}] cbsz:4 abid:{4 * kq}")
        if n_issued < 2 * NT:
            a("s_waitcnt lgkmcnt(0)")
            dma_tile(n_issued)
            n_issued += 1
            for kq in range(4):
                pv(kq)
                if kq < 3:
                    a("s_nop 0")
        else:
            for kq in range(4):
                a(f"s_waitcnt lgkmcnt({2 * (3 - kq)})")
                pv(kq)
    st(4)
    a("s_nop 4")
    for h in range(4):
        a(f"ds_write2st64_b32 v{vT+3}, v{vO+h}, v{vO+4+h} offset0:{pslot * 16 + 2 * h} offset1:{pslot * 16 + 2 * h + 1}")
    a("s_waitcnt lgkmcnt(0)")
    a("s_barrier")
    st(5)
    assert ((NW - 1) * RING + pslot * SLOT) // 256 + 1 < 256
    for w in range(NW):
        o = (w * RING + pslot * SLOT) // 256
        a(f"ds_read2st64_b32 v[{vOW+2*w}:{vOW+2*w+1}], v{vT+6} offset0:{o} offset1:{o + 1}")
    a(f"s_cmp_eq_u32 s{sWAVE}, s{sSPL}")
    a("s_cbranch_scc1 L_consume")
    a(f"s_cmp_eq_u32 s{sDIE}, s{sXCC}")
    for half in range(2):
        a(f"s_waitcnt lgkmcnt({2 * (1 - half)})")
        for w in range(2 * half, 2 * half + 2):
            op = "v_mul_f32" if w == 0 else "v_fmac_f32"
            a(f"{op} v{vR}, v{vML+2*w}, v{vOW+2*w}")
            a(f"{op} v{vR+1}, v{vML+2*w}, v{vOW+2*w+1}")
    if fast:
        a("s_cbranch_scc0 L_sendfar")
        a(f"buffer_store_dwordx4 v[{vR}:{vR+3}], v{vT+9}, s[{sW}:{sW+3}], s{sMSG} offen")
        st(6)
        st(7)
        a("s_branch L_fin" if diag else "s_endpgm")
        a("L_sendfar:")
    a(f"buffer_store_dwordx4 v[{vR}:{vR+3}], v{vT+9}, s[{sW}:{sW+3}], s{sMSG} offen sc1")
    st(6)
    st(7)
    a("s_branch L_fin" if diag else "s_endpgm")

    a("L_consume:")
    st(6)

    def poll(g):
        for j in range(3):
            off = f" offset:{j * 1024}" if j else ""
            a(f"buffer_load_dwordx4 v[{g+4*j}:{g+4*j+3}], v{vT+9}, s[{sW}:{sW+3}], s{sMSG} offen{off} sc1")

    def check(g, lab):
        a(f"v_xor_b32 v{vT+6}, v{g+3}, v{vNON}")
        a(f"v_xor_b32 v{vT+7}, v{g+7}, v{vNON}")
        a(f"v_xor_b32 v{vT+8}, v{g+11}, v{vNON}")
        a(f"v_or3_b32 v{vT+6}, v{vT+6}, v{vT+7}, v{vT+8}")
        a(f"v_cmp_ne_u32 vcc, 0, v{vT+6}")
        a(f"s_cbranch_vccz {lab}")

    def final(g):
        st(7)
        vMM = vT + 6
        a(f"v_max3_f32 v{vMM}, v{g+2}, v{g+6}, v{g+10}")
        a(f"v_max_f32 v{vMM}, v{vMM}, v{vU+2}")
        for k in (vU + 2, g + 2, g + 6, g + 10):
            a(f"v_sub_f32 v{k}, v{k}, v{vMM}")
        for k in (vU + 2, g + 2, g + 6, g + 10):
            a(f"v_exp_f32 v{k}, v{k}")
        a("s_nop 0")
        a(f"v_fma_f32 v{vXT}, v{vU+2}, v{vXT}, v{g+2}")
        a(f"v_mul_f32 v{vU}, v{vU+2}, v{vU}")
        a(f"v_add_f32 v{vXT}, v{vXT}, v{g+6}")
        a(f"v_mul_f32 v{vU+1}, v{vU+2}, v{vU+1}")
        a(f"v_add_f32 v{vXT}, v{vXT}, v{g+10}               ; L")
        a(f"v_fmac_f32 v{vU}, v{g+2}, v{g}")
        a(f"v_rcp_f32 v{vXT}, v{vXT}")
        a(f"v_fmac_f32 v{vU+1}, v{g+2}, v{g+1}")
        for j in range(1, 3):
            a(f"v_fmac_f32 v{vU}, v{g+4*j+2}, v{g+4*j}")
            a(f"v_fmac_f32 v{vU+1}, v{g+4*j+2}, v{g+4*j+1}")
        a(f"v_mul_f32 v{vU}, v{vU}, v{vXT}")
        a(f"v_mul_f32 v{vU+1}, v{vU+1}, v{vXT}")
        a(f"v_cvt_pk_bf16_f32 v{vU}, v{vU}, v{vU+1}")
        a(f"buffer_store_short v{vU}, v{vT+3}, s[{sO}:{sO+3}], s{sT0} offen")
        a(f"buffer_store_short_d16_hi v{vU}, v{vT+3}, s[{sO}:{sO+3}], s{sT0} offen offset:128")

    sets = [vG, vS, vS + 12][:npoll]
    poll(sets[0])
    a(f"v_sub_f32 v{vXT}, v{vXT}, v{vU+2}")
    a(f"v_sub_f32 v{vR+2}, v{vR+2}, v{vU+2}")
    a(f"v_exp_f32 v{vXT}, v{vXT}")
    a(f"v_exp_f32 v{vR+2}, v{vR+2}")
    a(f"s_mov_b32 s{sCNT}, {'0x40000' if exp == 0 else '4'}")
    a(f"s_lshl_b32 s{sT0}, s{sCH}, 8")
    a("s_waitcnt lgkmcnt(0)")
    if npoll == 3:
        poll(sets[1])
    a(f"v_mul_f32 v{vR}, v{vML}, v{vOW}")
    a(f"v_mul_f32 v{vR+1}, v{vML}, v{vOW+1}")
    for w in range(1, NW):
        a(f"v_fmac_f32 v{vR}, v{vML+2*w}, v{vOW+2*w}")
        a(f"v_fmac_f32 v{vR+1}, v{vML+2*w}, v{vOW+2*w+1}")
    a(f"v_mul_f32 v{vU}, v{vXT}, v{vVT}")
    a(f"v_mul_f32 v{vU+1}, v{vXT}, v{vVT+1}")
    a(f"v_add_f32 v{vXT}, v{vXT}, v{vR+2}                ; L0")
    a(f"v_fmac_f32 v{vU}, v{vR+2}, v{vR}                 ; O0 (col 0)")
    a(f"v_fmac_f32 v{vU+1}, v{vR+2}, v{vR+1}             ; O0 (col 1)")
    a(f"v_lshlrev_b32 v{vT+3}, 1, v{vLANE}")
    if npoll > 1:
        poll(sets[-1])
    a("L_poll:")
    a(f"s_sub_u32 s{sCNT}, s{sCNT}, 1")
    a("s_cbranch_scc1 L_giveup")
    for k, g in enumerate(sets):
        a(f"s_waitcnt vmcnt({3 * (npoll - 1)})")
        check(g, f"L_got{k}")
        if sleep:
            a(f"s_sleep {sleep}")
        poll(g)
    a("s_branch L_poll")
    a("L_giveup:")
    a("s_waitcnt vmcnt(0)")
    for k, g in enumerate(sets):
        a(f"L_got{k}:")
        final(g)
        if k < npoll - 1:
            a("s_branch L_fin" if diag else "s_endpgm")
    if diag:
        a("L_fin:")
        st(8)
        a("s_waitcnt lgkmcnt(0) vmcnt(0)")
        if stamp:
            a(f"s_cmp_eq_u32 s{sWAVE}, s{sSPL}")
            a("s_cbranch_scc0 L_end")
            for i in range(9):
                a(f"v_writelane_b32 v2, s{sST+2*i}, {i}")
            a(f"s_mov_b32 s{sT2}, 3")
            a(f"v_writelane_b32 v2, s{sT2}, 9")
            a(f"v_writelane_b32 v2, s{sXCC}, 10")
            a(f"s_lshl_b32 s{sT0}, s2, 6")
            a(f"s_add_u32 s{sT0}, s{sT0}, 0x800000")
            a(f"v_lshlrev_b32 v3, 2, v{vLANE}")
            a("s_mov_b64 exec, 0x7ff")
            a(f"buffer_store_dword v2, v3, s[{sW}:{sW+3}], s{sT0} offen")
        if amp is not None:
            a(f"s_sub_u32 s{sT0}, s{sST+2*amp}, s{sST}")
            a(f"s_mul_i32 s{sT0}, s{sT0}, {ampf}")
            a(f"s_min_u32 s{sT0}, s{sT0}, 100000")
            a("L_spin:")
            a("s_memrealtime s[92:93]")
            a("s_waitcnt lgkmcnt(0)")
            a(f"s_sub_u32 s{sT1}, s92, s{sST+16}")
            a(f"s_cmp_lt_u32 s{sT1}, s{sT0}")
            a("s_cbranch_scc1 L_spin")
    a("s_endpgm")

    a("L_helper:")
    a("s_load_dwordx2 s[20:21], s[0:1], 64")
    if exp == 1:
        a("s_endpgm")
    hA, hB, hC, hV = 12, 28, 44, 48
    a(f"v_mov_b32 v{vT+4}, {XB}")
    a(f"v_mov_b32 v{vT+5}, 0")
    a(f"ds_write_b32 v{vT+4}, v{vT+5} offset:{X_PROG}")
    a(f"v_mov_b32 v{vT+6}, 0x40000000")
    a(f"s_lshl_b32 s{sT1}, s{sPAIR}, 8")
    a(f"v_lshlrev_b32 v{vT+5}, 4, v{vT+1}")
    a(f"v_cmp_eq_u32 vcc, 0, v{vT+2}")
    a(f"v_add_u32 v{vT+5}, s{sT1}, v{vT+5}")
    a(f"s_lshl_b32 s{sT0}, s{sPAIR}, 10")
    a(f"v_cndmask_b32 v{vT+5}, v{vT+6}, v{vT+5}, vcc")
    a(f"v_lshlrev_b32 v{vT+7}, 8, v{vT+2}")
    a(f"v_cmp_gt_u32 vcc, 4, v{vT+2}")
    a(f"v_lshl_add_u32 v{vT+7}, v{vT+1}, 4, v{vT+7}")
    a(f"v_add_u32 v{vT+7}, s{sT0}, v{vT+7}")
    a(f"v_cndmask_b32 v{vT+7}, v{vT+6}, v{vT+7}, vcc     ; q offsets")
    a(f"s_lshr_b32 s{sT2}, s{sPAIR}, 3")
    a(f"s_lshl_b32 s{sT2}, s{sT2}, 1")
    a(f"v_mov_b32 v{vT+8}, s{sT2}")
    a(f"v_lshlrev_b32 v{vT+9}, 1, v{vLANE}                ; lane*2")
    a(f"v_mov_b32 v{vT+4}, 0")
    a(f"s_getreg_b32 s{sXCC}, hwreg(HW_REG_XCC_ID, 0, 4)")
    a(f"s_mov_b32 s{sC}, {f32((128 ** -0.5) * math.log2(math.e))}")
    a("s_waitcnt lgkmcnt(0)")
    srd(sKT, 10, 0x4000)
    srd(sQ, 4, 0x10000)
    srd(sM, 14, 16)
    srd(sVT, 12, 0x4000)
    srd(sW, 20, WS_SIZE)
    srd(sD, 18, 256)
    a(f"s_cmp_eq_u32 s{sCH}, 0")
    a(f"s_cselect_b32 s{sT0}, 0, 0x40000000")
    a(f"v_mov_b32 v{hV+4}, s{sT0}")
    a(f"buffer_load_dword v{hV+2}, v{hV+4}, s[{sW}:{sW+3}], 0 offen offset:12 sc1")
    for j in range(4):
        off = f" offset:{j * 64}" if j else ""
        a(f"buffer_load_dwordx4 v[{hA+4*j}:{hA+4*j+3}], v{vT+5}, s[{sKT}:{sKT+3}], 0 offen{off}")
        a(f"buffer_load_dwordx4 v[{hB+4*j}:{hB+4*j+3}], v{vT+7}, s[{sQ}:{sQ+3}], 0 offen{off}")
    a(f"buffer_load_ushort v{hV}, v{vT+9}, s[{sVT}:{sVT+3}], s{sT1} offen")
    a(f"buffer_load_ushort v{hV+5}, v{vT+9}, s[{sVT}:{sVT+3}], s{sT1} offen offset:128")
    a(f"buffer_load_ushort v{hV+1}, v{vT+8}, s[{sM}:{sM+3}], 0 offen")
    a("s_waitcnt vmcnt(0)")
    a(f"v_add_u32 v{hV+2}, 1, v{hV+2}")
    a(f"v_mov_b32 v{hV+3}, 1")
    a("s_mov_b64 exec, 1")
    a(f"buffer_store_dwordx2 v[{hV+2}:{hV+3}], v{hV+4}, s[{sD}:{sD+3}], 0 offen sc1")
    a("s_mov_b64 exec, -1")
    for j in range(4):
        cin = "0" if j == 0 else f"v[{hC}:{hC+3}]"
        a(f"v_mfma_f32_16x16x32_bf16 v[{hC}:{hC+3}], v[{hA+4*j}:{hA+4*j+3}], v[{hB+4*j}:{hB+4*j+3}], {cin}")
    a(f"v_lshlrev_b32 v{vT+9}, 2, v{vLANE}")
    a(f"v_lshlrev_b32 v{hV}, 16, v{hV}")
    a(f"v_lshlrev_b32 v{hV+5}, 16, v{hV+5}")
    a(f"v_add_u32 v{vT+9}, {XB + X_VT}, v{vT+9}")
    a(f"ds_write2st64_b32 v{vT+9}, v{hV}, v{hV+5} offset0:0 offset1:1")
    a(f"v_lshlrev_b32 v{hV+1}, 16, v{hV+1}")
    a(f"v_sub_f32 v{hV+1}, 1.0, v{hV+1}")
    a(f"v_mul_f32 v{hV+1}, {f32(-1e9 * math.log2(math.e))}, v{hV+1}")
    a(f"v_mov_b32 v{vT+7}, {XB}")
    a("s_nop 2")
    a(f"v_readlane_b32 s{sT2}, v{hC}, s{sSPL}")
    a("s_nop 1")
    a(f"v_mov_b32 v{hA}, s{sT2}")
    a(f"v_fma_f32 v{hA}, v{hA}, s{sC}, v{hV+1}")

    def wait_progress(val, lab):
        a(f"s_mov_b32 s{sCNT}, 0x4000")
        a(f"{lab}:")
        a(f"ds_read_b32 v{hA+2}, v{vT+7} offset:{X_PROG}")
        a(f"s_sub_u32 s{sCNT}, s{sCNT}, 1")
        a(f"s_cbranch_scc1 {lab}_ok")
        a("s_waitcnt lgkmcnt(0)")
        a(f"v_readfirstlane_b32 s{sT2}, v{hA+2}")
        a(f"s_sub_u32 s{sT2}, s{sT2}, {hex(val)}")
        a(f"s_cmp_le_u32 s{sT2}, {MAGIC + 2 - val}")
        a(f"s_cbranch_scc1 {lab}_ok")
        a("s_sleep 4")
        a(f"s_branch {lab}")
        a(f"{lab}_ok:")
        a("s_waitcnt lgkmcnt(0)")

    wait_progress(MAGIC, "L_prog1")
    a(f"s_mov_b32 s{sCNT}, 0x40000")
    a("L_tagloop:")
    a(f"buffer_load_dwordx2 v[{hB}:{hB+1}], v{vT+4}, s[{sD}:{sD+3}], 0 offen sc1")
    a(f"s_sub_u32 s{sCNT}, s{sCNT}, 1")
    a("s_cbranch_scc1 L_tagok")
    a("s_waitcnt vmcnt(0)")
    a(f"v_readfirstlane_b32 s{sT2}, v{hB+1}")
    a(f"s_cmp_eq_u32 s{sT2}, 1")
    a("s_cbranch_scc1 L_tagok")
    a("s_sleep 16")
    a("s_branch L_tagloop")
    a("L_tagok:")
    a("s_waitcnt vmcnt(0)")
    a(f"v_mov_b32 v{hA+1}, v{hB}                          ; tag")
    a(f"v_mov_b32 v{hB+2}, s{sXCC}")
    a(f"v_mov_b32 v{hB+3}, v{hB}")
    a(f"s_lshl_b32 s{sT0}, s{sCH}, 7")
    a(f"s_add_u32 s{sT0}, s{sT0}, {hex(XOFF)}")
    a("s_mov_b64 exec, 1")
    a(f"buffer_store_dwordx2 v[{hB+2}:{hB+3}], v{vT+4}, s[{sW}:{sW+3}], s{sT0} offen sc1")
    a("s_mov_b64 exec, -1")
    wait_progress(MAGIC + 1, "L_prog2")
    a(f"s_lshl_b32 s{sT0}, s{sPAIR}, 9")
    a(f"s_add_u32 s{sT0}, s{sT0}, {hex(XOFF)}")
    a(f"v_lshlrev_b32 v{hB+4}, 7, v{vLANE}")
    a(f"s_mov_b32 s{sCNT}, 0x40000")
    a("s_mov_b64 exec, 0xf")
    a("L_dieloop:")
    a(f"buffer_load_dwordx2 v[{hB+6}:{hB+7}], v{hB+4}, s[{sW}:{sW+3}], s{sT0} offen sc1")
    a(f"s_sub_u32 s{sCNT}, s{sCNT}, 1")
    a("s_cbranch_scc1 L_dieok")
    a("s_waitcnt vmcnt(0)")
    a(f"v_cmp_ne_u32 vcc, v{hB+7}, v{hA+1}")
    a("s_cbranch_vccz L_dieok")
    a("s_sleep 16")
    a("s_branch L_dieloop")
    a("L_dieok:")
    a("s_waitcnt vmcnt(0)")
    a(f"v_lshlrev_b32 v{hB+5}, 3, v{vLANE}")
    a(f"v_add_u32 v{hB+5}, {XB + X_XCC}, v{hB+5}")
    a(f"ds_write_b32 v{hB+5}, v{hB+6}")
    a("s_mov_b64 exec, 1")
    a(f"ds_write_b64 v{vT+7}, v[{hA}:{hA+1}]")
    a("s_mov_b64 exec, -1")
    if warm:
        wait_progress(MAGIC + 2, "L_prog3")
        a(f"s_lshl_b32 s{sMSG}, s{sCH}, 12")
        a(f"v_lshlrev_b32 v{vT+4}, 4, v{vLANE}")
        for j in range(3):
            off = f" offset:{j * 1024}" if j else ""
            a(f"buffer_load_dwordx4 v[{hB+4*j}:{hB+4*j+3}], v{vT+4}, s[{sW}:{sW+3}], s{sMSG} offen{off} sc1")
        a("s_waitcnt vmcnt(0)")
    a("s_waitcnt lgkmcnt(0)")
    a("L_end:")
    a("s_endpgm")
    a('.section .rodata,"a"')
    a(".p2align 6")
    a(f".amdhsa_kernel {label}")
    a(f"  .amdhsa_next_free_vgpr {NV}")
    a("  .amdhsa_next_free_sgpr 96")
    a(f"  .amdhsa_accum_offset {NV}")
    a("  .amdhsa_group_segment_fixed_size 0")
    a("  .amdhsa_kernarg_size 72")
    a("  .amdhsa_user_sgpr_count 2")
    a("  .amdhsa_user_sgpr_kernarg_segment_ptr 1")
    a("  .amdhsa_system_sgpr_workgroup_id_x 1")
    a("  .amdhsa_float_denorm_mode_32 3")
    a(".end_amdhsa_kernel")
    return a.text(), (NW + 1) * 64, LDS


if __name__ == "__main__":
    import argparse
    ap = argparse.ArgumentParser()
    ap.add_argument("-o", default="/dev/stdout")
    ap.add_argument("--nslot", type=int, default=2)
    ap.add_argument("--nt", type=int, default=1)
    ap.add_argument("--xcd", type=int, default=1)
    ap.add_argument("--stamp", type=int, default=0)
    ap.add_argument("--amp", type=int, default=None)
    ap.add_argument("--ampf", type=int, default=10)
    ap.add_argument("--fast", type=int, default=1)
    ap.add_argument("--warm", type=int, default=0)
    ap.add_argument("--sleep", type=int, default=0)
    ap.add_argument("--prio", type=int, default=0)
    ap.add_argument("--prog1", type=int, default=8)
    ap.add_argument("--prog2", type=int, default=6)
    ap.add_argument("--npoll", type=int, default=2)
    ap.add_argument("--exp", type=int, default=0)
    args = ap.parse_args()
    t, b, l = gen(args.nslot, bool(args.nt), bool(args.xcd), stamp=bool(args.stamp), amp=args.amp, ampf=args.ampf,
                  fast=args.fast, warm=args.warm, sleep=args.sleep, prio=args.prio, exp=args.exp, prog1=args.prog1, prog2=args.prog2, npoll=args.npoll)
    open(args.o, "w").write(t)
    print(f"256,{b},{l}")
```

```python
import math
import struct

NAME = "standalone__tree_speculative_verify_tree_attention_over_candidate_token_tree__decode"

HEADER = """; Kernarg layout for this problem (72 bytes, ptrs only, base s[0:1]):
"""


def f32(x):
    return hex(struct.unpack("<I", struct.pack("<f", x))[0])


class Asm:
    def __init__(self):
        self.lines = []
        self.vmq = []

    def __call__(self, s=""):
        for l in s.split("\n"):
            self.lines.append(l if (l.endswith(":") or l.startswith(".") or l.startswith(";")) else "    " + l)

    def vm(self, s, tag):
        self(s)
        self.vmq.append(tag)

    def wait_vm(self, tag):
        if tag not in self.vmq:
            return
        idx = max(i for i, t in enumerate(self.vmq) if t == tag)
        n = len(self.vmq) - 1 - idx
        assert n < 64
        self(f"s_waitcnt vmcnt({n})")
        self.vmq = self.vmq[idx + 1:]

    def text(self):
        return "\n".join(self.lines) + "\n"


def gen(NSLOT=2, nt=True, xcd=True, label=NAME + "_kernel", stamp=False, amp=None, ampf=10,
        fast=1, warm=0, sleep=0, prio=0, exp=0, prog1=8, prog2=6, npoll=1, touchv=0, toucho=0, warmpol="sc1", pollpol="sc1", nearpol="", outpol=""):
    NW = 4
    NT = 16
    SLOT = 4096
    RING = NSLOT * SLOT
    XB = NW * RING
    X_XT, X_NON, X_PROG, X_XCC, X_ML, X_VT = 0, 4, 8, 16, 64, 256
    LDS = XB + 768
    XOFF = 0x100000
    MAGIC = 0x5eed1e57
    STEP = NW * SLOT
    pol = " nt" if nt else ""
    a = Asm()
    diag = stamp or amp is not None
    sST = 72

    def st(i):
        if diag:
            a(f"s_memrealtime s[{sST+2*i}:{sST+2*i+1}]")

    sSPL, sCNT = 22, 23
    sQ, sK, sV, sVT, sO, sW = 24, 28, 32, 36, 40, 44
    sKT, sM, sD = 48, 52, 56
    sWAVE, sGOFF, sLDS, sPAIR, sT0, sT1, sT2 = 60, 61, 62, 63, 64, 65, 66
    sSOFF = 67
    sC = 68
    sCH = 69
    sEX = 92 if not diag else 94
    sXCC = 91
    sMSG = 90
    sDIE = 71
    vLANE = 1
    vT = 2
    vKO = 12
    vVO = 16
    vKA = 18
    vVA = 22
    vP2 = 24
    vVT = 26
    vXCC = 28
    vXT = 30
    vNON = 31
    vQ = 32
    vFA = 52
    vFB = 68
    vP = 84
    vM, vL = 86, 87
    vO = 88
    vS = 96
    NV = vS + NT * 4

    def srd(reg, lo, size):
        a(f"s_mov_b32 s{reg}, s{lo}")
        a(f"s_and_b32 s{reg+1}, s{lo+1}, 0xffff")
        a(f"s_mov_b32 s{reg+2}, {hex(size)}")
        a(f"s_mov_b32 s{reg+3}, 0x20000")

    WS_SIZE = 0x1000000 if diag else XOFF + 256 * 128

    a(HEADER.rstrip())
    a(f"; @launch grid=(256,1,1) block=({(NW + 1) * 64},1,1) lds={LDS}")
    a('.amdgcn_target "amdgcn-amd-amdhsa--gfx950"')
    a(".text")
    a(f".globl {label}")
    a(".p2align 8")
    a(f".type {label},@function")
    a(f"{label}:")
    a("s_cmp_ge_u32 s2, 0x100")
    a("s_cbranch_scc1 L_end")
    st(0)
    a("s_load_dwordx16 s[4:19], s[0:1], 0")
    a(f"v_lshrrev_b32 v{vT}, 6, v0")
    a(f"v_and_b32 v{vLANE}, 63, v0")
    a(f"v_bfe_u32 v{vT+1}, v0, 4, 2                  ; g = (lane>>4)&3")
    a(f"v_readfirstlane_b32 s{sWAVE}, v{vT}")
    a(f"v_and_b32 v{vT+2}, 15, v0                    ; i = lane&15")
    if xcd:
        a(f"s_and_b32 s{sCH}, s2, 7")
        a(f"s_lshl_b32 s{sCH}, s{sCH}, 5")
        a(f"s_lshr_b32 s{sT0}, s2, 3")
        a(f"s_add_u32 s{sCH}, s{sCH}, s{sT0}")
    else:
        a(f"s_mov_b32 s{sCH}, s2")
    a(f"s_lshr_b32 s{sPAIR}, s{sCH}, 2")
    a(f"s_and_b32 s{sSPL}, s{sCH}, 3")
    a(f"s_cmp_eq_u32 s{sWAVE}, {NW}")
    a("s_cbranch_scc1 L_helper")
    a(f"v_xor_b32 v{vT+4}, v{vT+1}, v{vT+2}")
    a(f"v_lshlrev_b32 v{vT+3}, 8, v{vT+1}            ; g*256")
    a(f"v_lshl_add_u32 v{vKO}, v{vT+4}, 4, v{vT+3}")
    a(f"s_lshl_b32 s{sGOFF}, s{sCH}, 18                ; chunk*256KiB")
    a(f"s_lshl_b32 s{sT0}, s{sWAVE}, 12")
    for n in range(1, 4):
        a(f"v_xor_b32 v{vKO+n}, {n * 64}, v{vKO}")
    a(f"s_add_u32 s{sGOFF}, s{sGOFF}, s{sT0}")
    a(f"s_mul_i32 s{sLDS}, s{sWAVE}, {RING}")
    a(f"s_mov_b32 s{sK+2}, 0x4000000")
    a(f"s_mov_b32 s{sK+3}, 0x20000")
    a(f"s_mov_b32 s{sQ+2}, 0x10000")
    a(f"s_mov_b32 s{sQ+3}, 0x20000")
    a(f"s_mov_b32 m0, s{sLDS}")
    a(f"s_mov_b32 s{sSOFF}, s{sGOFF}")
    a(f"s_lshl_b32 s{sT1}, s{sPAIR}, 10")
    a(f"v_lshlrev_b32 v{vT+5}, 8, v{vT+2}")
    a(f"v_cmp_gt_u32 vcc, 4, v{vT+2}")
    a(f"v_lshl_add_u32 v{vT+5}, v{vT+1}, 4, v{vT+5}")
    a(f"v_mov_b32 v{vT+6}, 0x40000000")
    a(f"v_add_u32 v{vT+5}, s{sT1}, v{vT+5}")
    a(f"v_cndmask_b32 v{vT+5}, v{vT+6}, v{vT+5}, vcc     ; q offsets")
    a("s_waitcnt lgkmcnt(0)")
    st(1)
    a(f"s_mov_b32 s{sK}, s6")
    a(f"s_and_b32 s{sK+1}, s7, 0xffff")

    def dma_tile(n):
        r = sK if n < NT else sV
        for i in range(4):
            vo = (vKO + i) if n < NT else vVO
            off = f" offset:{i * 1024}" if i else ""
            a.vm(f"buffer_load_dwordx4 v{vo}, s[{r}:{r+3}], s{sSOFF} offen{off}{pol} lds", f"tile{n}")

    def set_tile(n):
        slot = n % NSLOT
        t = n if n < NT else n - NT
        a(f"s_add_u32 s{sSOFF}, s{sGOFF}, {t * STEP}")
        a(f"s_add_u32 m0, s{sLDS}, {slot * SLOT}")

    dma_tile(0)
    a("s_load_dwordx2 s[20:21], s[0:1], 64")
    a(f"s_mov_b32 s{sQ}, s4")
    a(f"s_and_b32 s{sQ+1}, s5, 0xffff")
    for j in range(4):
        off = f" offset:{j * 64}" if j else ""
        a.vm(f"buffer_load_dwordx4 v[{vQ+4*j}:{vQ+4*j+3}], v{vT+5}, s[{sQ}:{sQ+3}], 0 offen{off}", "q")
    assert NSLOT <= NT
    for n in range(1, NSLOT):
        set_tile(n)
        a("s_nop 0")
        dma_tile(n)
    n_issued = NSLOT
    if prio:
        a(f"s_setprio {prio}")
    a(f"s_sub_u32 s{sT0}, s{sSPL}, s{sWAVE}")
    a(f"s_sub_u32 s{sT0}, s{sT0}, 1")
    a(f"s_and_b32 s{sT0}, s{sT0}, 3")
    a(f"s_lshl_b32 s{sT1}, s{sPAIR}, 2")
    a(f"s_add_u32 s{sT1}, s{sT1}, s{sWAVE}")
    a(f"s_lshl_b32 s{sT1}, s{sT1}, 2")
    a(f"s_add_u32 s{sT0}, s{sT0}, s{sT1}")
    a(f"s_lshl_b32 s{sT0}, s{sT0}, 10")
    a(f"s_lshl_b32 s{sT1}, s{sCH}, 12")
    a(f"s_cmp_eq_u32 s{sWAVE}, s{sSPL}")
    a(f"s_cselect_b32 s{sMSG}, s{sT1}, s{sT0}")
    srd(sV, 8, 0x4000000)
    srd(sO, 16, 0x10000)
    a(f"s_mov_b32 s{sC}, {f32((128 ** -0.5) * math.log2(math.e))}")
    a(f"s_getreg_b32 s{sXCC}, hwreg(HW_REG_XCC_ID, 0, 4)")
    a(f"v_lshlrev_b32 v{vT+4}, 2, v{vT+1}")
    a(f"v_xor_b32 v{vT+4}, v{vT+4}, v{vT+2}")
    a(f"v_lshl_add_u32 v{vVO}, v{vT+4}, 4, v{vT+3}")
    a(f"v_xor_b32 v{vT+4}, v{vT+1}, v{vT+2}")
    a(f"v_lshlrev_b32 v{vT+8}, 8, v{vT+2}")
    a(f"v_lshl_add_u32 v{vT+8}, v{vT+4}, 4, v{vT+8}")
    a(f"v_add_u32 v{vKA}, s{sLDS}, v{vT+8}")
    for j in range(1, 4):
        a(f"v_xor_b32 v{vKA+j}, {j * 64}, v{vKA}")
    a(f"v_lshrrev_b32 v{vT+4}, 2, v{vT+2}                 ; q")
    a(f"v_lshlrev_b32 v{vT+7}, 8, v{vT+4}")
    a(f"v_lshlrev_b32 v{vT+4}, 1, v{vT+4}")
    a(f"v_xor_b32 v{vT+4}, v{vT+4}, v{vT+1}")
    a(f"v_lshl_add_u32 v{vT+7}, v{vT+4}, 5, v{vT+7}")
    a(f"v_and_b32 v{vT+8}, 3, v{vT+2}")
    a(f"v_lshl_add_u32 v{vT+7}, v{vT+8}, 3, v{vT+7}")
    a(f"v_add_u32 v{vVA}, s{sLDS}, v{vT+7}")
    a(f"v_xor_b32 v{vVA+1}, 128, v{vVA}")
    for k in range(8):
        a(f"v_mov_b32 v{vO+k}, 0")

    def progress(val):
        a(f"v_mov_b32 v{vT+4}, {XB + X_PROG}")
        a(f"v_mov_b32 v{vT+5}, {hex(val)}")
        a(f"ds_write_b32 v{vT+4}, v{vT+5}")

    def max_in(t):
        if t == 0:
            a(f"v_max3_f32 v{vM}, v{vS}, v{vS+1}, v{vS+2}")
            a(f"v_max_f32 v{vM}, v{vM}, v{vS+3}")
        else:
            a(f"v_max3_f32 v{vM}, v{vM}, v{vS+4*t}, v{vS+4*t+1}")
            a(f"v_max3_f32 v{vM}, v{vM}, v{vS+4*t+2}, v{vS+4*t+3}")

    for t in range(NT):
        slot = t % NSLOT
        a.wait_vm("q" if t == 0 else f"tile{t}")
        if t == 0:
            st(2)
        for j in range(4):
            a(f"ds_read_b128 v[{vFA+4*j}:{vFA+4*j+3}], v{vKA+j} offset:{slot * SLOT}")
        set_tile(n_issued)
        if t > 0:
            a("s_nop 1")
            max_in(t - 1)
        a("s_waitcnt lgkmcnt(0)")
        dma_tile(n_issued)
        n_issued += 1
        for j in range(4):
            cin = "0" if j == 0 else f"v[{vS+4*t}:{vS+4*t+3}]"
            a(f"v_mfma_f32_16x16x32_bf16 v[{vS+4*t}:{vS+4*t+3}], v[{vFA+4*j}:{vFA+4*j+3}], v[{vQ+4*j}:{vQ+4*j+3}], {cin}")
        if t == prog1:
            progress(MAGIC)
    st(3)
    srd(sW, 20, WS_SIZE)
    a("s_nop 3")
    max_in(NT - 1)
    a(f"v_mov_b32 v{vT}, v{vM}")
    a("s_nop 1")
    a(f"v_permlane16_swap_b32 v{vM}, v{vT}")
    a(f"v_max_f32 v{vM}, v{vM}, v{vT}")
    a(f"v_mov_b32 v{vT}, v{vM}")
    a("s_nop 1")
    a(f"v_permlane32_swap_b32 v{vM}, v{vT}")
    a(f"v_max_f32 v{vM}, v{vM}, v{vT}")
    a(f"v_mul_f32 v{vM}, s{sC}, v{vM}")
    a(f"v_mov_b32 v{vL}, 0")

    pslot = (2 * NT) % NSLOT
    assert NSLOT >= 2
    vOW = 32
    vML = 52
    vR = 60
    vU = 64
    vG = 72

    def p_tile(t, dst):
        for k in range(4):
            a(f"v_fma_f32 v{vS+4*t+k}, v{vS+4*t+k}, s{sC}, -v{vM}")
        for k in range(4):
            a(f"v_exp_f32 v{vS+4*t+k}, v{vS+4*t+k}")
        a("s_nop 0")
        a(f"v_add_f32 v{vL}, v{vL}, v{vS+4*t}")
        a(f"v_cvt_pk_bf16_f32 v{dst}, v{vS+4*t}, v{vS+4*t+1}")
        a(f"v_add_f32 v{vL}, v{vL}, v{vS+4*t+1}")
        a(f"v_add_f32 v{vL}, v{vL}, v{vS+4*t+2}")
        a(f"v_cvt_pk_bf16_f32 v{dst+1}, v{vS+4*t+2}, v{vS+4*t+3}")
        a(f"v_add_f32 v{vL}, v{vL}, v{vS+4*t+3}")

    for t in range(NT):
        n = NT + t
        slot = n % NSLOT
        if t < NT - 1:
            p_tile(t, vP)
        if t == NT - 2:
            p_tile(NT - 1, vP2)
            a(f"v_mov_b32 v{vT}, v{vL}")
            a(f"v_lshlrev_b32 v{vT+5}, 3, v{vLANE}")
            a(f"s_lshl_b32 s{sT0}, s{sWAVE}, 5")
            a(f"v_permlane16_swap_b32 v{vL}, v{vT}")
            a(f"v_add_f32 v{vL}, v{vL}, v{vT}")
            a(f"v_mov_b32 v{vT}, v{vL}")
            a(f"v_add_u32 v{vT+5}, s{sT0}, v{vT+5}")
            a(f"s_lshl_b32 s{sT0}, s{sWAVE}, 3")
            a(f"v_permlane32_swap_b32 v{vL}, v{vT}")
            a(f"v_add_f32 v{vL}, v{vL}, v{vT}")
            a(f"v_mov_b32 v{vT+7}, s{sT0}                      ; h*8")
            a("s_mov_b64 exec, 0xf")
            a(f"ds_write_b64 v{vT+5}, v[{vM}:{vL}] offset:{XB + X_ML}")
            a("s_mov_b64 exec, -1")
            a(f"v_mov_b32 v{vT+8}, {XB}")
            a(f"v_lshlrev_b32 v{vT+9}, 2, v{vLANE}")
            a(f"v_add_u32 v{vT+9}, {XB + X_VT}, v{vT+9}")
            a("s_waitcnt lgkmcnt(0)")
            a("s_barrier")
            for w in range(NW):
                a(f"ds_read_b64 v[{vML+2*w}:{vML+2*w+1}], v{vT+7} offset:{XB + X_ML + 32 * w}")
            a(f"ds_read_b64 v[{vXT}:{vNON}], v{vT+8}")
            a(f"ds_read_b32 v{vXCC}, v{vT+7} offset:{XB + X_XCC}")
            a(f"ds_read2st64_b32 v[{vVT}:{vVT+1}], v{vT+9} offset0:0 offset1:1")
            a(f"v_lshlrev_b32 v{vT+6}, 2, v{vLANE}")
            a(f"v_add_u32 v{vT+3}, s{sLDS}, v{vT+6}")
            a(f"s_lshl_b32 s{sT0}, s{sWAVE}, 9")
            a(f"v_add_u32 v{vT+6}, s{sT0}, v{vT+6}             ; h*512 + lane*4")
            a(f"v_lshlrev_b32 v{vT+9}, 4, v{vLANE}             ; lane*16")
            a("s_waitcnt lgkmcnt(0)")
            a(f"v_max3_f32 v{vR+2}, v{vML}, v{vML+2}, v{vML+4}")
            a(f"v_readfirstlane_b32 s{sDIE}, v{vXCC}")
            a(f"v_max_f32 v{vR+2}, v{vR+2}, v{vML+6}")
            for w in range(NW):
                a(f"v_sub_f32 v{vML+2*w}, v{vML+2*w}, v{vR+2}")
            for w in range(NW):
                a(f"v_exp_f32 v{vML+2*w}, v{vML+2*w}")
            a(f"v_mov_b32 v{vR+3}, v{vNON}")
            a(f"v_mul_f32 v{vT+4}, v{vML}, v{vML+1}")
            for w in range(1, NW):
                a(f"v_fmac_f32 v{vT+4}, v{vML+2*w}, v{vML+2*w+1}")
            a(f"v_rcp_f32 v{vT+5}, v{vT+4}")
            a(f"v_log_f32 v{vT+4}, v{vT+4}")
            a("s_nop 0")
            for w in range(NW):
                a(f"v_mul_f32 v{vML+2*w}, v{vML+2*w}, v{vT+5}")
            a(f"v_add_f32 v{vR+2}, v{vR+2}, v{vT+4}")
            a(f"v_max_f32 v{vU+2}, v{vR+2}, v{vXT}")
        if t == prog2:
            progress(MAGIC + 1)
        if warm and t == NT - warm:
            assert prog2 < NT - warm < NT - 2
            progress(MAGIC + 2)
        a.wait_vm(f"tile{n}")
        for kq in range(4):
            for half in range(2):
                f = vFB + 4 * kq + 2 * half
                a(f"ds_read_b64_tr_b16 v[{f}:{f+1}], v{vVA+half} offset:{slot * SLOT + kq * 1024}")
        if n_issued < 2 * NT:
            set_tile(n_issued)
        p = vP2 if t == NT - 1 else vP

        def pv(kq):
            for half in range(2):
                f = vFB + 4 * kq + 2 * half
                o = vO + 4 * half
                a(f"v_mfma_f32_4x4x4_16b_bf16 v[{o}:{o+3}], v[{p}:{p+1}], v[{f}:{f+1}], v[{o}:{o+3}] cbsz:4 abid:{4 * kq}")
        if n_issued < 2 * NT:
            a("s_waitcnt lgkmcnt(0)")
            dma_tile(n_issued)
            n_issued += 1
            for kq in range(4):
                pv(kq)
                if kq < 3:
                    a("s_nop 0")
        else:
            for kq in range(4):
                a(f"s_waitcnt lgkmcnt({2 * (3 - kq)})")
                pv(kq)
    st(4)
    a("s_nop 4")
    for h in range(4):
        a(f"ds_write2st64_b32 v{vT+3}, v{vO+h}, v{vO+4+h} offset0:{pslot * 16 + 2 * h} offset1:{pslot * 16 + 2 * h + 1}")
    a("s_waitcnt lgkmcnt(0)")
    a("s_barrier")
    st(5)
    assert ((NW - 1) * RING + pslot * SLOT) // 256 + 1 < 256
    for w in range(NW):
        o = (w * RING + pslot * SLOT) // 256
        a(f"ds_read2st64_b32 v[{vOW+2*w}:{vOW+2*w+1}], v{vT+6} offset0:{o} offset1:{o + 1}")
    a(f"s_cmp_eq_u32 s{sWAVE}, s{sSPL}")
    a("s_cbranch_scc1 L_consume")
    a(f"s_cmp_eq_u32 s{sDIE}, s{sXCC}")
    for half in range(2):
        a(f"s_waitcnt lgkmcnt({2 * (1 - half)})")
        for w in range(2 * half, 2 * half + 2):
            op = "v_mul_f32" if w == 0 else "v_fmac_f32"
            a(f"{op} v{vR}, v{vML+2*w}, v{vOW+2*w}")
            a(f"{op} v{vR+1}, v{vML+2*w}, v{vOW+2*w+1}")
    if fast:
        a("s_cbranch_scc0 L_sendfar")
        a(f"buffer_store_dwordx4 v[{vR}:{vR+3}], v{vT+9}, s[{sW}:{sW+3}], s{sMSG} offen {nearpol}".rstrip())
        st(6)
        st(7)
        a("s_branch L_fin" if diag else "s_endpgm")
        a("L_sendfar:")
    a(f"buffer_store_dwordx4 v[{vR}:{vR+3}], v{vT+9}, s[{sW}:{sW+3}], s{sMSG} offen sc1")
    st(6)
    st(7)
    a("s_branch L_fin" if diag else "s_endpgm")

    a("L_consume:")
    st(6)

    def poll(g):
        for j in range(3):
            off = f" offset:{j * 1024}" if j else ""
            a(f"buffer_load_dwordx4 v[{g+4*j}:{g+4*j+3}], v{vT+9}, s[{sW}:{sW+3}], s{sMSG} offen{off} {pollpol}")

    def check(g, lab):
        a(f"v_xor_b32 v{vT+6}, v{g+3}, v{vNON}")
        a(f"v_xor_b32 v{vT+7}, v{g+7}, v{vNON}")
        a(f"v_xor_b32 v{vT+8}, v{g+11}, v{vNON}")
        a(f"v_or3_b32 v{vT+6}, v{vT+6}, v{vT+7}, v{vT+8}")
        a(f"v_cmp_ne_u32 vcc, 0, v{vT+6}")
        a(f"s_cbranch_vccz {lab}")

    def final(g):
        st(7)
        vMM = vT + 6
        a(f"v_max3_f32 v{vMM}, v{g+2}, v{g+6}, v{g+10}")
        a(f"v_max_f32 v{vMM}, v{vMM}, v{vU+2}")
        for k in (vU + 2, g + 2, g + 6, g + 10):
            a(f"v_sub_f32 v{k}, v{k}, v{vMM}")
        for k in (vU + 2, g + 2, g + 6, g + 10):
            a(f"v_exp_f32 v{k}, v{k}")
        a("s_nop 0")
        a(f"v_fma_f32 v{vXT}, v{vU+2}, v{vXT}, v{g+2}")
        a(f"v_mul_f32 v{vU}, v{vU+2}, v{vU}")
        a(f"v_add_f32 v{vXT}, v{vXT}, v{g+6}")
        a(f"v_mul_f32 v{vU+1}, v{vU+2}, v{vU+1}")
        a(f"v_add_f32 v{vXT}, v{vXT}, v{g+10}               ; L")
        a(f"v_fmac_f32 v{vU}, v{g+2}, v{g}")
        a(f"v_rcp_f32 v{vXT}, v{vXT}")
        a(f"v_fmac_f32 v{vU+1}, v{g+2}, v{g+1}")
        for j in range(1, 3):
            a(f"v_fmac_f32 v{vU}, v{g+4*j+2}, v{g+4*j}")
            a(f"v_fmac_f32 v{vU+1}, v{g+4*j+2}, v{g+4*j+1}")
        a(f"v_mul_f32 v{vU}, v{vU}, v{vXT}")
        a(f"v_mul_f32 v{vU+1}, v{vU+1}, v{vXT}")
        a(f"v_cvt_pk_bf16_f32 v{vU}, v{vU}, v{vU+1}")
        a(f"buffer_store_short v{vU}, v{vT+3}, s[{sO}:{sO+3}], s{sT0} offen {outpol}".rstrip())
        a(f"buffer_store_short_d16_hi v{vU}, v{vT+3}, s[{sO}:{sO+3}], s{sT0} offen offset:128 {outpol}".rstrip())

    sets = [vG, vS, vS + 12][:npoll]
    poll(sets[0])
    a(f"v_sub_f32 v{vXT}, v{vXT}, v{vU+2}")
    a(f"v_sub_f32 v{vR+2}, v{vR+2}, v{vU+2}")
    a(f"v_exp_f32 v{vXT}, v{vXT}")
    a(f"v_exp_f32 v{vR+2}, v{vR+2}")
    a(f"s_mov_b32 s{sCNT}, {'0x40000' if exp == 0 else '4'}")
    a(f"s_lshl_b32 s{sT0}, s{sCH}, 8")
    a("s_waitcnt lgkmcnt(0)")
    if npoll == 3:
        poll(sets[1])
    a(f"v_mul_f32 v{vR}, v{vML}, v{vOW}")
    a(f"v_mul_f32 v{vR+1}, v{vML}, v{vOW+1}")
    for w in range(1, NW):
        a(f"v_fmac_f32 v{vR}, v{vML+2*w}, v{vOW+2*w}")
        a(f"v_fmac_f32 v{vR+1}, v{vML+2*w}, v{vOW+2*w+1}")
    a(f"v_mul_f32 v{vU}, v{vXT}, v{vVT}")
    a(f"v_mul_f32 v{vU+1}, v{vXT}, v{vVT+1}")
    a(f"v_add_f32 v{vXT}, v{vXT}, v{vR+2}                ; L0")
    a(f"v_fmac_f32 v{vU}, v{vR+2}, v{vR}                 ; O0 (col 0)")
    a(f"v_fmac_f32 v{vU+1}, v{vR+2}, v{vR+1}             ; O0 (col 1)")
    a(f"v_lshlrev_b32 v{vT+3}, 1, v{vLANE}")
    if npoll > 1:
        poll(sets[-1])
    a("L_poll:")
    a(f"s_sub_u32 s{sCNT}, s{sCNT}, 1")
    a("s_cbranch_scc1 L_giveup")
    for k, g in enumerate(sets):
        a(f"s_waitcnt vmcnt({3 * (npoll - 1)})")
        check(g, f"L_got{k}")
        if sleep:
            a(f"s_sleep {sleep}")
        poll(g)
    a("s_branch L_poll")
    a("L_giveup:")
    a("s_waitcnt vmcnt(0)")
    for k, g in enumerate(sets):
        a(f"L_got{k}:")
        final(g)
        if k < npoll - 1:
            a("s_branch L_fin" if diag else "s_endpgm")
    if diag:
        a("L_fin:")
        st(8)
        a("s_waitcnt lgkmcnt(0) vmcnt(0)")
        if stamp:
            a(f"s_cmp_eq_u32 s{sWAVE}, s{sSPL}")
            a("s_cbranch_scc0 L_end")
            for i in range(9):
                a(f"v_writelane_b32 v2, s{sST+2*i}, {i}")
            a(f"s_mov_b32 s{sT2}, 3")
            a(f"v_writelane_b32 v2, s{sT2}, 9")
            a(f"v_writelane_b32 v2, s{sXCC}, 10")
            a(f"s_lshl_b32 s{sT0}, s2, 6")
            a(f"s_add_u32 s{sT0}, s{sT0}, 0x800000")
            a(f"v_lshlrev_b32 v3, 2, v{vLANE}")
            a("s_mov_b64 exec, 0x7ff")
            a(f"buffer_store_dword v2, v3, s[{sW}:{sW+3}], s{sT0} offen")
        if amp is not None:
            a(f"s_sub_u32 s{sT0}, s{sST+2*amp}, s{sST}")
            a(f"s_mul_i32 s{sT0}, s{sT0}, {ampf}")
            a(f"s_min_u32 s{sT0}, s{sT0}, 100000")
            a("L_spin:")
            a("s_memrealtime s[92:93]")
            a("s_waitcnt lgkmcnt(0)")
            a(f"s_sub_u32 s{sT1}, s92, s{sST+16}")
            a(f"s_cmp_lt_u32 s{sT1}, s{sT0}")
            a("s_cbranch_scc1 L_spin")
    a("s_endpgm")

    a("L_helper:")
    a("s_load_dwordx2 s[20:21], s[0:1], 64")
    if exp == 1:
        a("s_endpgm")
    hA, hB, hC, hV = 12, 28, 44, 48
    a(f"v_mov_b32 v{vT+4}, {XB}")
    a(f"v_mov_b32 v{vT+5}, 0")
    a(f"ds_write_b32 v{vT+4}, v{vT+5} offset:{X_PROG}")
    a(f"v_mov_b32 v{vT+6}, 0x40000000")
    a(f"s_lshl_b32 s{sT1}, s{sPAIR}, 8")
    a(f"v_lshlrev_b32 v{vT+5}, 4, v{vT+1}")
    a(f"v_cmp_eq_u32 vcc, 0, v{vT+2}")
    a(f"v_add_u32 v{vT+5}, s{sT1}, v{vT+5}")
    a(f"s_lshl_b32 s{sT0}, s{sPAIR}, 10")
    a(f"v_cndmask_b32 v{vT+5}, v{vT+6}, v{vT+5}, vcc")
    a(f"v_lshlrev_b32 v{vT+7}, 8, v{vT+2}")
    a(f"v_cmp_gt_u32 vcc, 4, v{vT+2}")
    a(f"v_lshl_add_u32 v{vT+7}, v{vT+1}, 4, v{vT+7}")
    a(f"v_add_u32 v{vT+7}, s{sT0}, v{vT+7}")
    a(f"v_cndmask_b32 v{vT+7}, v{vT+6}, v{vT+7}, vcc     ; q offsets")
    a(f"s_lshr_b32 s{sT2}, s{sPAIR}, 3")
    a(f"s_lshl_b32 s{sT2}, s{sT2}, 1")
    a(f"v_mov_b32 v{vT+8}, s{sT2}")
    a(f"v_lshlrev_b32 v{vT+9}, 1, v{vLANE}                ; lane*2")
    a(f"v_mov_b32 v{vT+4}, 0")
    a(f"s_getreg_b32 s{sXCC}, hwreg(HW_REG_XCC_ID, 0, 4)")
    a(f"s_mov_b32 s{sC}, {f32((128 ** -0.5) * math.log2(math.e))}")
    a("s_waitcnt lgkmcnt(0)")
    srd(sKT, 10, 0x4000)
    srd(sQ, 4, 0x10000)
    srd(sM, 14, 16)
    srd(sVT, 12, 0x4000)
    srd(sW, 20, WS_SIZE)
    srd(sD, 18, 256)
    a(f"s_cmp_eq_u32 s{sCH}, 0")
    a(f"s_cselect_b32 s{sT0}, 0, 0x40000000")
    a(f"v_mov_b32 v{hV+4}, s{sT0}")
    a(f"buffer_load_dword v{hV+2}, v{hV+4}, s[{sW}:{sW+3}], 0 offen offset:12 sc1")
    for j in range(4):
        off = f" offset:{j * 64}" if j else ""
        a(f"buffer_load_dwordx4 v[{hA+4*j}:{hA+4*j+3}], v{vT+5}, s[{sKT}:{sKT+3}], 0 offen{off}")
        a(f"buffer_load_dwordx4 v[{hB+4*j}:{hB+4*j+3}], v{vT+7}, s[{sQ}:{sQ+3}], 0 offen{off}")
    a(f"buffer_load_ushort v{hV}, v{vT+9}, s[{sVT}:{sVT+3}], s{sT1} offen")
    a(f"buffer_load_ushort v{hV+5}, v{vT+9}, s[{sVT}:{sVT+3}], s{sT1} offen offset:128")
    a(f"buffer_load_ushort v{hV+1}, v{vT+8}, s[{sM}:{sM+3}], 0 offen")
    if touchv:
        srd(sV, 8, 0x4000000)
        a(f"s_lshl_b32 s{sT0}, s{sCH}, 18")
        a(f"v_lshlrev_b32 v{hV+6}, {18 - (touchv - 1)}, v{vLANE}")
        a(f"s_mov_b64 exec, {hex((1 << (1 << (touchv - 1))) - 1)}")
        a(f"buffer_load_dword v{hV+7}, v{hV+6}, s[{sV}:{sV+3}], s{sT0} offen nt")
        a("s_mov_b64 exec, -1")
    if toucho:
        srd(sO, 16, 0x10000)
        a(f"s_lshl_b32 s{sT0}, s{sCH}, 8")
        a(f"buffer_load_dword v{hV+8}, v{vT+4}, s[{sO}:{sO+3}], s{sT0} offen")
    a("s_waitcnt vmcnt(0)")
    a(f"v_add_u32 v{hV+2}, 1, v{hV+2}")
    a(f"v_mov_b32 v{hV+3}, 1")
    a("s_mov_b64 exec, 1")
    a(f"buffer_store_dwordx2 v[{hV+2}:{hV+3}], v{hV+4}, s[{sD}:{sD+3}], 0 offen sc1")
    a("s_mov_b64 exec, -1")
    for j in range(4):
        cin = "0" if j == 0 else f"v[{hC}:{hC+3}]"
        a(f"v_mfma_f32_16x16x32_bf16 v[{hC}:{hC+3}], v[{hA+4*j}:{hA+4*j+3}], v[{hB+4*j}:{hB+4*j+3}], {cin}")
    a(f"v_lshlrev_b32 v{vT+9}, 2, v{vLANE}")
    a(f"v_lshlrev_b32 v{hV}, 16, v{hV}")
    a(f"v_lshlrev_b32 v{hV+5}, 16, v{hV+5}")
    a(f"v_add_u32 v{vT+9}, {XB + X_VT}, v{vT+9}")
    a(f"ds_write2st64_b32 v{vT+9}, v{hV}, v{hV+5} offset0:0 offset1:1")
    a(f"v_lshlrev_b32 v{hV+1}, 16, v{hV+1}")
    a(f"v_sub_f32 v{hV+1}, 1.0, v{hV+1}")
    a(f"v_mul_f32 v{hV+1}, {f32(-1e9 * math.log2(math.e))}, v{hV+1}")
    a(f"v_mov_b32 v{vT+7}, {XB}")
    a("s_nop 2")
    a(f"v_readlane_b32 s{sT2}, v{hC}, s{sSPL}")
    a("s_nop 1")
    a(f"v_mov_b32 v{hA}, s{sT2}")
    a(f"v_fma_f32 v{hA}, v{hA}, s{sC}, v{hV+1}")

    def wait_progress(val, lab):
        a(f"s_mov_b32 s{sCNT}, 0x4000")
        a(f"{lab}:")
        a(f"ds_read_b32 v{hA+2}, v{vT+7} offset:{X_PROG}")
        a(f"s_sub_u32 s{sCNT}, s{sCNT}, 1")
        a(f"s_cbranch_scc1 {lab}_ok")
        a("s_waitcnt lgkmcnt(0)")
        a(f"v_readfirstlane_b32 s{sT2}, v{hA+2}")
        a(f"s_sub_u32 s{sT2}, s{sT2}, {hex(val)}")
        a(f"s_cmp_le_u32 s{sT2}, {MAGIC + 2 - val}")
        a(f"s_cbranch_scc1 {lab}_ok")
        a("s_sleep 4")
        a(f"s_branch {lab}")
        a(f"{lab}_ok:")
        a("s_waitcnt lgkmcnt(0)")

    wait_progress(MAGIC, "L_prog1")
    a(f"s_mov_b32 s{sCNT}, 0x40000")
    a("L_tagloop:")
    a(f"buffer_load_dwordx2 v[{hB}:{hB+1}], v{vT+4}, s[{sD}:{sD+3}], 0 offen sc1")
    a(f"s_sub_u32 s{sCNT}, s{sCNT}, 1")
    a("s_cbranch_scc1 L_tagok")
    a("s_waitcnt vmcnt(0)")
    a(f"v_readfirstlane_b32 s{sT2}, v{hB+1}")
    a(f"s_cmp_eq_u32 s{sT2}, 1")
    a("s_cbranch_scc1 L_tagok")
    a("s_sleep 16")
    a("s_branch L_tagloop")
    a("L_tagok:")
    a("s_waitcnt vmcnt(0)")
    a(f"v_mov_b32 v{hA+1}, v{hB}                          ; tag")
    a(f"v_mov_b32 v{hB+2}, s{sXCC}")
    a(f"v_mov_b32 v{hB+3}, v{hB}")
    a(f"s_lshl_b32 s{sT0}, s{sCH}, 7")
    a(f"s_add_u32 s{sT0}, s{sT0}, {hex(XOFF)}")
    a("s_mov_b64 exec, 1")
    a(f"buffer_store_dwordx2 v[{hB+2}:{hB+3}], v{vT+4}, s[{sW}:{sW+3}], s{sT0} offen sc1")
    a("s_mov_b64 exec, -1")
    wait_progress(MAGIC + 1, "L_prog2")
    a(f"s_lshl_b32 s{sT0}, s{sPAIR}, 9")
    a(f"s_add_u32 s{sT0}, s{sT0}, {hex(XOFF)}")
    a(f"v_lshlrev_b32 v{hB+4}, 7, v{vLANE}")
    a(f"s_mov_b32 s{sCNT}, 0x40000")
    a("s_mov_b64 exec, 0xf")
    a("L_dieloop:")
    a(f"buffer_load_dwordx2 v[{hB+6}:{hB+7}], v{hB+4}, s[{sW}:{sW+3}], s{sT0} offen sc1")
    a(f"s_sub_u32 s{sCNT}, s{sCNT}, 1")
    a("s_cbranch_scc1 L_dieok")
    a("s_waitcnt vmcnt(0)")
    a(f"v_cmp_ne_u32 vcc, v{hB+7}, v{hA+1}")
    a("s_cbranch_vccz L_dieok")
    a("s_sleep 16")
    a("s_branch L_dieloop")
    a("L_dieok:")
    a("s_waitcnt vmcnt(0)")
    a(f"v_lshlrev_b32 v{hB+5}, 3, v{vLANE}")
    a(f"v_add_u32 v{hB+5}, {XB + X_XCC}, v{hB+5}")
    a(f"ds_write_b32 v{hB+5}, v{hB+6}")
    a("s_mov_b64 exec, 1")
    a(f"ds_write_b64 v{vT+7}, v[{hA}:{hA+1}]")
    a("s_mov_b64 exec, -1")
    if warm:
        wait_progress(MAGIC + 2, "L_prog3")
        a(f"s_lshl_b32 s{sMSG}, s{sCH}, 12")
        a(f"v_lshlrev_b32 v{vT+4}, 4, v{vLANE}")
        for j in range(3):
            off = f" offset:{j * 1024}" if j else ""
            a(f"buffer_load_dwordx4 v[{hB+4*j}:{hB+4*j+3}], v{vT+4}, s[{sW}:{sW+3}], s{sMSG} offen{off} {warmpol}")
        a("s_waitcnt vmcnt(0)")
    a("s_waitcnt lgkmcnt(0)")
    a("L_end:")
    a("s_endpgm")
    a('.section .rodata,"a"')
    a(".p2align 6")
    a(f".amdhsa_kernel {label}")
    a(f"  .amdhsa_next_free_vgpr {NV}")
    a("  .amdhsa_next_free_sgpr 96")
    a(f"  .amdhsa_accum_offset {NV}")
    a("  .amdhsa_group_segment_fixed_size 0")
    a("  .amdhsa_kernarg_size 72")
    a("  .amdhsa_user_sgpr_count 2")
    a("  .amdhsa_user_sgpr_kernarg_segment_ptr 1")
    a("  .amdhsa_system_sgpr_workgroup_id_x 1")
    a("  .amdhsa_float_denorm_mode_32 3")
    a(".end_amdhsa_kernel")
    return a.text(), (NW + 1) * 64, LDS


if __name__ == "__main__":
    import argparse
    ap = argparse.ArgumentParser()
    ap.add_argument("-o", default="/dev/stdout")
    ap.add_argument("--nslot", type=int, default=2)
    ap.add_argument("--nt", type=int, default=1)
    ap.add_argument("--xcd", type=int, default=1)
    ap.add_argument("--stamp", type=int, default=0)
    ap.add_argument("--amp", type=int, default=None)
    ap.add_argument("--ampf", type=int, default=10)
    ap.add_argument("--fast", type=int, default=1)
    ap.add_argument("--warm", type=int, default=0)
    ap.add_argument("--sleep", type=int, default=0)
    ap.add_argument("--prio", type=int, default=0)
    ap.add_argument("--prog1", type=int, default=8)
    ap.add_argument("--prog2", type=int, default=6)
    ap.add_argument("--npoll", type=int, default=1)
    ap.add_argument("--touchv", type=int, default=0)
    ap.add_argument("--toucho", type=int, default=0)
    ap.add_argument("--warmpol", default="sc1")
    ap.add_argument("--pollpol", default="sc1")
    ap.add_argument("--nearpol", default="")
    ap.add_argument("--outpol", default="")
    ap.add_argument("--exp", type=int, default=0)
    args = ap.parse_args()
    t, b, l = gen(args.nslot, bool(args.nt), bool(args.xcd), stamp=bool(args.stamp), amp=args.amp, ampf=args.ampf,
                  fast=args.fast, warm=args.warm, sleep=args.sleep, prio=args.prio, exp=args.exp, prog1=args.prog1, prog2=args.prog2, npoll=args.npoll, touchv=args.touchv, toucho=args.toucho, warmpol=args.warmpol.replace("_", " "), pollpol=args.pollpol.replace("_", " "), nearpol=args.nearpol.replace("_", " "), outpol=args.outpol.replace("_", " "))
    open(args.o, "w").write(t)
    print(f"256,{b},{l}")
```

```python
import math
import struct

NAME = "standalone__tree_speculative_verify_tree_attention_over_candidate_token_tree__decode"

HEADER = """; Kernarg layout for this problem (72 bytes, ptrs only, base s[0:1]):
"""

DESC = """;
;
; Combine inside the workgroup through LDS: wave h ends up with {O/l, lse} of head h over 1024 keys.
;   it 16-byte granules {O'[lane], O'[64+lane], lse, tag} through d_ws; it polls until every tag matches,
;
"""


def f32(x):
    return hex(struct.unpack("<I", struct.pack("<f", x))[0])


class Asm:
    def __init__(self):
        self.lines = []
        self.vmq = []

    def __call__(self, s=""):
        for l in s.split("\n"):
            self.lines.append(l if (l.endswith(":") or l.startswith(".") or l.startswith(";")) else "    " + l)

    def vm(self, s, tag):
        self(s)
        self.vmq.append(tag)

    def wait_vm(self, tag):
        if tag not in self.vmq:
            return
        idx = max(i for i, t in enumerate(self.vmq) if t == tag)
        n = len(self.vmq) - 1 - idx
        assert n < 64
        self(f"s_waitcnt vmcnt({n})")
        self.vmq = self.vmq[idx + 1:]

    def text(self):
        return "\n".join(self.lines) + "\n"


def gen(NSLOT=2, nt=True, xcd=True, label=NAME + "_kernel", stamp=False, amp=None, ampf=10,
        fast=1, warm=0, sleep=0, prio=0, exp=0, prog1=8, prog2=6, npoll=1, touchv=0, toucho=0, warmpol="sc1", pollpol="sc1", nearpol="", outpol="", early=0):
    NW = 4
    NT = 16
    SLOT = 4096
    RING = NSLOT * SLOT
    XB = NW * RING
    X_XT, X_NON, X_PROG, X_XCC, X_ML, X_VT = 0, 4, 8, 16, 64, 256
    LDS = XB + 768
    XOFF = 0x100000
    MAGIC = 0x5eed1e57
    STEP = NW * SLOT
    pol = " nt" if nt else ""
    a = Asm()
    diag = stamp or amp is not None
    sST = 72

    def st(i):
        if diag:
            a(f"s_memrealtime s[{sST+2*i}:{sST+2*i+1}]")

    sSPL, sCNT = 22, 23
    sQ, sK, sV, sVT, sO, sW = 24, 28, 32, 36, 40, 44
    sKT, sM, sD = 48, 52, 56
    sWAVE, sGOFF, sLDS, sPAIR, sT0, sT1, sT2 = 60, 61, 62, 63, 64, 65, 66
    sSOFF = 67
    sC = 68
    sCH = 69
    sEX = 92 if not diag else 94
    sXCC = 91
    sMSG = 90
    sDIE = 71
    vLANE = 1
    vT = 2
    vKO = 12
    vVO = 16
    vKA = 18
    vVA = 22
    vP2 = 24
    vVT = 26
    vXCC = 28
    vXT = 30
    vNON = 31
    vQ = 32
    vFA = 52
    vFB = 68
    vP = 84
    vM, vL = 86, 87
    vO = 88
    vS = 96
    NV = vS + NT * 4

    def srd(reg, lo, size):
        a(f"s_mov_b32 s{reg}, s{lo}")
        a(f"s_and_b32 s{reg+1}, s{lo+1}, 0xffff")
        a(f"s_mov_b32 s{reg+2}, {hex(size)}")
        a(f"s_mov_b32 s{reg+3}, 0x20000")

    WS_SIZE = 0x1000000 if diag else XOFF + 256 * 128

    a(HEADER.rstrip())
    assert NSLOT != 3 or XB == 49152
    if NSLOT == 3:
        a(DESC.rstrip())
    a(f"; @launch grid=(256,1,1) block=({(NW + 1) * 64},1,1) lds={LDS}")
    a('.amdgcn_target "amdgcn-amd-amdhsa--gfx950"')
    a(".text")
    a(f".globl {label}")
    a(".p2align 8")
    a(f".type {label},@function")
    a(f"{label}:")
    a("s_cmp_ge_u32 s2, 0x100")
    a("s_cbranch_scc1 L_end")
    st(0)
    a("s_load_dwordx16 s[4:19], s[0:1], 0")
    a(f"v_lshrrev_b32 v{vT}, 6, v0")
    a(f"v_and_b32 v{vLANE}, 63, v0")
    a(f"v_bfe_u32 v{vT+1}, v0, 4, 2                  ; g = (lane>>4)&3")
    a(f"v_readfirstlane_b32 s{sWAVE}, v{vT}")
    a(f"v_and_b32 v{vT+2}, 15, v0                    ; i = lane&15")
    if xcd:
        a(f"s_and_b32 s{sCH}, s2, 7")
        a(f"s_lshl_b32 s{sCH}, s{sCH}, 5")
        a(f"s_lshr_b32 s{sT0}, s2, 3")
        a(f"s_add_u32 s{sCH}, s{sCH}, s{sT0}")
    else:
        a(f"s_mov_b32 s{sCH}, s2")
    a(f"s_lshr_b32 s{sPAIR}, s{sCH}, 2")
    a(f"s_and_b32 s{sSPL}, s{sCH}, 3")
    a(f"s_cmp_eq_u32 s{sWAVE}, {NW}")
    a("s_cbranch_scc1 L_helper")
    a(f"v_xor_b32 v{vT+4}, v{vT+1}, v{vT+2}")
    a(f"v_lshlrev_b32 v{vT+3}, 8, v{vT+1}            ; g*256")
    a(f"v_lshl_add_u32 v{vKO}, v{vT+4}, 4, v{vT+3}")
    a(f"s_lshl_b32 s{sGOFF}, s{sCH}, 18                ; chunk*256KiB")
    a(f"s_lshl_b32 s{sT0}, s{sWAVE}, 12")
    for n in range(1, 4):
        a(f"v_xor_b32 v{vKO+n}, {n * 64}, v{vKO}")
    a(f"s_add_u32 s{sGOFF}, s{sGOFF}, s{sT0}")
    a(f"s_mul_i32 s{sLDS}, s{sWAVE}, {RING}")
    a(f"s_mov_b32 s{sK+2}, 0x4000000")
    a(f"s_mov_b32 s{sK+3}, 0x20000")
    a(f"s_mov_b32 s{sQ+2}, 0x10000")
    a(f"s_mov_b32 s{sQ+3}, 0x20000")
    a(f"s_mov_b32 m0, s{sLDS}")
    a(f"s_mov_b32 s{sSOFF}, s{sGOFF}")
    a(f"s_lshl_b32 s{sT1}, s{sPAIR}, 10")
    a(f"v_lshlrev_b32 v{vT+5}, 8, v{vT+2}")
    a(f"v_cmp_gt_u32 vcc, 4, v{vT+2}")
    a(f"v_lshl_add_u32 v{vT+5}, v{vT+1}, 4, v{vT+5}")
    a(f"v_mov_b32 v{vT+6}, 0x40000000")
    a(f"v_add_u32 v{vT+5}, s{sT1}, v{vT+5}")
    a(f"v_cndmask_b32 v{vT+5}, v{vT+6}, v{vT+5}, vcc     ; q offsets")
    a("s_waitcnt lgkmcnt(0)")
    st(1)
    a(f"s_mov_b32 s{sK}, s6")
    a(f"s_and_b32 s{sK+1}, s7, 0xffff")

    def dma_tile(n):
        r = sK if n < NT else sV
        for i in range(4):
            vo = (vKO + i) if n < NT else vVO
            off = f" offset:{i * 1024}" if i else ""
            a.vm(f"buffer_load_dwordx4 v{vo}, s[{r}:{r+3}], s{sSOFF} offen{off}{pol} lds", f"tile{n}")

    def set_tile(n):
        slot = n % NSLOT
        t = n if n < NT else n - NT
        a(f"s_add_u32 s{sSOFF}, s{sGOFF}, {t * STEP}")
        a(f"s_add_u32 m0, s{sLDS}, {slot * SLOT}")

    dma_tile(0)
    a("s_load_dwordx2 s[20:21], s[0:1], 64")
    a(f"s_mov_b32 s{sQ}, s4")
    a(f"s_and_b32 s{sQ+1}, s5, 0xffff")
    for j in range(4):
        off = f" offset:{j * 64}" if j else ""
        a.vm(f"buffer_load_dwordx4 v[{vQ+4*j}:{vQ+4*j+3}], v{vT+5}, s[{sQ}:{sQ+3}], 0 offen{off}", "q")
    assert NSLOT <= NT
    DEPTH = NSLOT - 1 if early else NSLOT
    for n in range(1, DEPTH):
        set_tile(n)
        a("s_nop 0")
        dma_tile(n)
    n_issued = DEPTH
    if prio:
        a(f"s_setprio {prio}")
    a(f"s_sub_u32 s{sT0}, s{sSPL}, s{sWAVE}")
    a(f"s_sub_u32 s{sT0}, s{sT0}, 1")
    a(f"s_and_b32 s{sT0}, s{sT0}, 3")
    a(f"s_lshl_b32 s{sT1}, s{sPAIR}, 2")
    a(f"s_add_u32 s{sT1}, s{sT1}, s{sWAVE}")
    a(f"s_lshl_b32 s{sT1}, s{sT1}, 2")
    a(f"s_add_u32 s{sT0}, s{sT0}, s{sT1}")
    a(f"s_lshl_b32 s{sT0}, s{sT0}, 10")
    a(f"s_lshl_b32 s{sT1}, s{sCH}, 12")
    a(f"s_cmp_eq_u32 s{sWAVE}, s{sSPL}")
    a(f"s_cselect_b32 s{sMSG}, s{sT1}, s{sT0}")
    srd(sV, 8, 0x4000000)
    srd(sO, 16, 0x10000)
    a(f"s_mov_b32 s{sC}, {f32((128 ** -0.5) * math.log2(math.e))}")
    a(f"s_getreg_b32 s{sXCC}, hwreg(HW_REG_XCC_ID, 0, 4)")
    a(f"v_lshlrev_b32 v{vT+4}, 2, v{vT+1}")
    a(f"v_xor_b32 v{vT+4}, v{vT+4}, v{vT+2}")
    a(f"v_lshl_add_u32 v{vVO}, v{vT+4}, 4, v{vT+3}")
    a(f"v_xor_b32 v{vT+4}, v{vT+1}, v{vT+2}")
    a(f"v_lshlrev_b32 v{vT+8}, 8, v{vT+2}")
    a(f"v_lshl_add_u32 v{vT+8}, v{vT+4}, 4, v{vT+8}")
    a(f"v_add_u32 v{vKA}, s{sLDS}, v{vT+8}")
    for j in range(1, 4):
        a(f"v_xor_b32 v{vKA+j}, {j * 64}, v{vKA}")
    a(f"v_lshrrev_b32 v{vT+4}, 2, v{vT+2}                 ; q")
    a(f"v_lshlrev_b32 v{vT+7}, 8, v{vT+4}")
    a(f"v_lshlrev_b32 v{vT+4}, 1, v{vT+4}")
    a(f"v_xor_b32 v{vT+4}, v{vT+4}, v{vT+1}")
    a(f"v_lshl_add_u32 v{vT+7}, v{vT+4}, 5, v{vT+7}")
    a(f"v_and_b32 v{vT+8}, 3, v{vT+2}")
    a(f"v_lshl_add_u32 v{vT+7}, v{vT+8}, 3, v{vT+7}")
    a(f"v_add_u32 v{vVA}, s{sLDS}, v{vT+7}")
    a(f"v_xor_b32 v{vVA+1}, 128, v{vVA}")
    for k in range(8):
        a(f"v_mov_b32 v{vO+k}, 0")

    def progress(val):
        a(f"v_mov_b32 v{vT+4}, {XB + X_PROG}")
        a(f"v_mov_b32 v{vT+5}, {hex(val)}")
        a(f"ds_write_b32 v{vT+4}, v{vT+5}")

    def max_in(t):
        if t == 0:
            a(f"v_max3_f32 v{vM}, v{vS}, v{vS+1}, v{vS+2}")
            a(f"v_max_f32 v{vM}, v{vM}, v{vS+3}")
        else:
            a(f"v_max3_f32 v{vM}, v{vM}, v{vS+4*t}, v{vS+4*t+1}")
            a(f"v_max3_f32 v{vM}, v{vM}, v{vS+4*t+2}, v{vS+4*t+3}")

    for t in range(NT):
        slot = t % NSLOT
        a.wait_vm("q" if t == 0 else f"tile{t}")
        if t == 0:
            st(2)
        if early:
            set_tile(n_issued)
            a("s_nop 0")
            dma_tile(n_issued)
            n_issued += 1
        for j in range(4):
            a(f"ds_read_b128 v[{vFA+4*j}:{vFA+4*j+3}], v{vKA+j} offset:{slot * SLOT}")
        if not early:
            set_tile(n_issued)
        if t > 0:
            a("s_nop 1")
            max_in(t - 1)
        a("s_waitcnt lgkmcnt(0)")
        if not early:
            dma_tile(n_issued)
            n_issued += 1
        for j in range(4):
            cin = "0" if j == 0 else f"v[{vS+4*t}:{vS+4*t+3}]"
            a(f"v_mfma_f32_16x16x32_bf16 v[{vS+4*t}:{vS+4*t+3}], v[{vFA+4*j}:{vFA+4*j+3}], v[{vQ+4*j}:{vQ+4*j+3}], {cin}")
        if t == prog1:
            progress(MAGIC)
    st(3)
    srd(sW, 20, WS_SIZE)
    a("s_nop 3")
    max_in(NT - 1)
    a(f"v_mov_b32 v{vT}, v{vM}")
    a("s_nop 1")
    a(f"v_permlane16_swap_b32 v{vM}, v{vT}")
    a(f"v_max_f32 v{vM}, v{vM}, v{vT}")
    a(f"v_mov_b32 v{vT}, v{vM}")
    a("s_nop 1")
    a(f"v_permlane32_swap_b32 v{vM}, v{vT}")
    a(f"v_max_f32 v{vM}, v{vM}, v{vT}")
    a(f"v_mul_f32 v{vM}, s{sC}, v{vM}")
    a(f"v_mov_b32 v{vL}, 0")

    pslot = (2 * NT) % NSLOT
    assert NSLOT >= 2
    vOW = 32
    vML = 52
    vR = 60
    vU = 64
    vG = 72

    def p_tile(t, dst):
        for k in range(4):
            a(f"v_fma_f32 v{vS+4*t+k}, v{vS+4*t+k}, s{sC}, -v{vM}")
        for k in range(4):
            a(f"v_exp_f32 v{vS+4*t+k}, v{vS+4*t+k}")
        a("s_nop 0")
        a(f"v_add_f32 v{vL}, v{vL}, v{vS+4*t}")
        a(f"v_cvt_pk_bf16_f32 v{dst}, v{vS+4*t}, v{vS+4*t+1}")
        a(f"v_add_f32 v{vL}, v{vL}, v{vS+4*t+1}")
        a(f"v_add_f32 v{vL}, v{vL}, v{vS+4*t+2}")
        a(f"v_cvt_pk_bf16_f32 v{dst+1}, v{vS+4*t+2}, v{vS+4*t+3}")
        a(f"v_add_f32 v{vL}, v{vL}, v{vS+4*t+3}")

    for t in range(NT):
        n = NT + t
        slot = n % NSLOT
        if t < NT - 1:
            p_tile(t, vP)
        if t == NT - 2:
            a("; P of the last tile too: (max, sum) are final, combine weights are computed while 2 tiles are in flight")
            p_tile(NT - 1, vP2)
            a(f"v_mov_b32 v{vT}, v{vL}")
            a(f"v_lshlrev_b32 v{vT+5}, 3, v{vLANE}")
            a(f"s_lshl_b32 s{sT0}, s{sWAVE}, 5")
            a(f"v_permlane16_swap_b32 v{vL}, v{vT}")
            a(f"v_add_f32 v{vL}, v{vL}, v{vT}")
            a(f"v_mov_b32 v{vT}, v{vL}")
            a(f"v_add_u32 v{vT+5}, s{sT0}, v{vT+5}")
            a(f"s_lshl_b32 s{sT0}, s{sWAVE}, 3")
            a(f"v_permlane32_swap_b32 v{vL}, v{vT}")
            a(f"v_add_f32 v{vL}, v{vL}, v{vT}")
            a(f"v_mov_b32 v{vT+7}, s{sT0}                      ; h*8")
            a("s_mov_b64 exec, 0xf")
            a(f"ds_write_b64 v{vT+5}, v[{vM}:{vL}] offset:{XB + X_ML}")
            a("s_mov_b64 exec, -1")
            a(f"v_mov_b32 v{vT+8}, {XB}")
            a(f"v_lshlrev_b32 v{vT+9}, 2, v{vLANE}")
            a(f"v_add_u32 v{vT+9}, {XB + X_VT}, v{vT+9}")
            a("s_waitcnt lgkmcnt(0)")
            a("s_barrier")
            for w in range(NW):
                a(f"ds_read_b64 v[{vML+2*w}:{vML+2*w+1}], v{vT+7} offset:{XB + X_ML + 32 * w}")
            a(f"ds_read_b64 v[{vXT}:{vNON}], v{vT+8}")
            a(f"ds_read_b32 v{vXCC}, v{vT+7} offset:{XB + X_XCC}")
            a(f"ds_read2st64_b32 v[{vVT}:{vVT+1}], v{vT+9} offset0:0 offset1:1")
            a(f"v_lshlrev_b32 v{vT+6}, 2, v{vLANE}")
            a(f"v_add_u32 v{vT+3}, s{sLDS}, v{vT+6}")
            a(f"s_lshl_b32 s{sT0}, s{sWAVE}, 9")
            a(f"v_add_u32 v{vT+6}, s{sT0}, v{vT+6}             ; h*512 + lane*4")
            a(f"v_lshlrev_b32 v{vT+9}, 4, v{vLANE}             ; lane*16")
            a("s_waitcnt lgkmcnt(0)")
            a(f"v_max3_f32 v{vR+2}, v{vML}, v{vML+2}, v{vML+4}")
            a(f"v_readfirstlane_b32 s{sDIE}, v{vXCC}")
            a(f"v_max_f32 v{vR+2}, v{vR+2}, v{vML+6}")
            for w in range(NW):
                a(f"v_sub_f32 v{vML+2*w}, v{vML+2*w}, v{vR+2}")
            for w in range(NW):
                a(f"v_exp_f32 v{vML+2*w}, v{vML+2*w}")
            a(f"v_mov_b32 v{vR+3}, v{vNON}")
            a(f"v_mul_f32 v{vT+4}, v{vML}, v{vML+1}")
            for w in range(1, NW):
                a(f"v_fmac_f32 v{vT+4}, v{vML+2*w}, v{vML+2*w+1}")
            a(f"v_rcp_f32 v{vT+5}, v{vT+4}")
            a(f"v_log_f32 v{vT+4}, v{vT+4}")
            a("s_nop 0")
            for w in range(NW):
                a(f"v_mul_f32 v{vML+2*w}, v{vML+2*w}, v{vT+5}")
            a(f"v_add_f32 v{vR+2}, v{vR+2}, v{vT+4}")
            a(f"v_max_f32 v{vU+2}, v{vR+2}, v{vXT}")
        if t == prog2:
            progress(MAGIC + 1)
        if warm and t == NT - warm:
            assert prog2 < NT - warm < NT - 2
            progress(MAGIC + 2)
        a.wait_vm(f"tile{n}")
        more = n_issued < 2 * NT
        if early and more:
            set_tile(n_issued)
            a("s_nop 0")
            dma_tile(n_issued)
            n_issued += 1
        for kq in range(4):
            for half in range(2):
                f = vFB + 4 * kq + 2 * half
                a(f"ds_read_b64_tr_b16 v[{f}:{f+1}], v{vVA+half} offset:{slot * SLOT + kq * 1024}")
        if more and not early:
            set_tile(n_issued)
        p = vP2 if t == NT - 1 else vP

        def pv(kq):
            for half in range(2):
                f = vFB + 4 * kq + 2 * half
                o = vO + 4 * half
                a(f"v_mfma_f32_4x4x4_16b_bf16 v[{o}:{o+3}], v[{p}:{p+1}], v[{f}:{f+1}], v[{o}:{o+3}] cbsz:4 abid:{4 * kq}")
        if more and not early:
            a("s_waitcnt lgkmcnt(0)")
            dma_tile(n_issued)
            n_issued += 1
            for kq in range(4):
                pv(kq)
                if kq < 3:
                    a("s_nop 0")
        else:
            for kq in range(4):
                a(f"s_waitcnt lgkmcnt({2 * (3 - kq)})")
                pv(kq)
    st(4)
    a("s_nop 4")
    for h in range(4):
        a(f"ds_write2st64_b32 v{vT+3}, v{vO+h}, v{vO+4+h} offset0:{pslot * 16 + 2 * h} offset1:{pslot * 16 + 2 * h + 1}")
    a("s_waitcnt lgkmcnt(0)")
    a("s_barrier")
    st(5)
    assert ((NW - 1) * RING + pslot * SLOT) // 256 + 1 < 256
    for w in range(NW):
        o = (w * RING + pslot * SLOT) // 256
        a(f"ds_read2st64_b32 v[{vOW+2*w}:{vOW+2*w+1}], v{vT+6} offset0:{o} offset1:{o + 1}")
    a(f"s_cmp_eq_u32 s{sWAVE}, s{sSPL}")
    a("s_cbranch_scc1 L_consume")
    a(f"s_cmp_eq_u32 s{sDIE}, s{sXCC}")
    for half in range(2):
        a(f"s_waitcnt lgkmcnt({2 * (1 - half)})")
        for w in range(2 * half, 2 * half + 2):
            op = "v_mul_f32" if w == 0 else "v_fmac_f32"
            a(f"{op} v{vR}, v{vML+2*w}, v{vOW+2*w}")
            a(f"{op} v{vR+1}, v{vML+2*w}, v{vOW+2*w+1}")
    if fast:
        a("s_cbranch_scc0 L_sendfar")
        a(f"buffer_store_dwordx4 v[{vR}:{vR+3}], v{vT+9}, s[{sW}:{sW+3}], s{sMSG} offen {nearpol}".rstrip())
        st(6)
        st(7)
        a("s_branch L_fin" if diag else "s_endpgm")
        a("L_sendfar:")
    a(f"buffer_store_dwordx4 v[{vR}:{vR+3}], v{vT+9}, s[{sW}:{sW+3}], s{sMSG} offen sc1")
    st(6)
    st(7)
    a("s_branch L_fin" if diag else "s_endpgm")

    a("L_consume:")
    st(6)

    def poll(g):
        for j in range(3):
            off = f" offset:{j * 1024}" if j else ""
            a(f"buffer_load_dwordx4 v[{g+4*j}:{g+4*j+3}], v{vT+9}, s[{sW}:{sW+3}], s{sMSG} offen{off} {pollpol}")

    def check(g, lab):
        a(f"v_xor_b32 v{vT+6}, v{g+3}, v{vNON}")
        a(f"v_xor_b32 v{vT+7}, v{g+7}, v{vNON}")
        a(f"v_xor_b32 v{vT+8}, v{g+11}, v{vNON}")
        a(f"v_or3_b32 v{vT+6}, v{vT+6}, v{vT+7}, v{vT+8}")
        a(f"v_cmp_ne_u32 vcc, 0, v{vT+6}")
        a(f"s_cbranch_vccz {lab}")

    def final(g):
        st(7)
        vMM = vT + 6
        a(f"v_max3_f32 v{vMM}, v{g+2}, v{g+6}, v{g+10}")
        a(f"v_max_f32 v{vMM}, v{vMM}, v{vU+2}")
        for k in (vU + 2, g + 2, g + 6, g + 10):
            a(f"v_sub_f32 v{k}, v{k}, v{vMM}")
        for k in (vU + 2, g + 2, g + 6, g + 10):
            a(f"v_exp_f32 v{k}, v{k}")
        a("s_nop 0")
        a(f"v_fma_f32 v{vXT}, v{vU+2}, v{vXT}, v{g+2}")
        a(f"v_mul_f32 v{vU}, v{vU+2}, v{vU}")
        a(f"v_add_f32 v{vXT}, v{vXT}, v{g+6}")
        a(f"v_mul_f32 v{vU+1}, v{vU+2}, v{vU+1}")
        a(f"v_add_f32 v{vXT}, v{vXT}, v{g+10}               ; L")
        a(f"v_fmac_f32 v{vU}, v{g+2}, v{g}")
        a(f"v_rcp_f32 v{vXT}, v{vXT}")
        a(f"v_fmac_f32 v{vU+1}, v{g+2}, v{g+1}")
        for j in range(1, 3):
            a(f"v_fmac_f32 v{vU}, v{g+4*j+2}, v{g+4*j}")
            a(f"v_fmac_f32 v{vU+1}, v{g+4*j+2}, v{g+4*j+1}")
        a(f"v_mul_f32 v{vU}, v{vU}, v{vXT}")
        a(f"v_mul_f32 v{vU+1}, v{vU+1}, v{vXT}")
        a(f"v_cvt_pk_bf16_f32 v{vU}, v{vU}, v{vU+1}")
        a(f"buffer_store_short v{vU}, v{vT+3}, s[{sO}:{sO+3}], s{sT0} offen {outpol}".rstrip())
        a(f"buffer_store_short_d16_hi v{vU}, v{vT+3}, s[{sO}:{sO+3}], s{sT0} offen offset:128 {outpol}".rstrip())

    sets = [vG, vS, vS + 12][:npoll]
    poll(sets[0])
    a(f"v_sub_f32 v{vXT}, v{vXT}, v{vU+2}")
    a(f"v_sub_f32 v{vR+2}, v{vR+2}, v{vU+2}")
    a(f"v_exp_f32 v{vXT}, v{vXT}")
    a(f"v_exp_f32 v{vR+2}, v{vR+2}")
    a(f"s_mov_b32 s{sCNT}, {'0x40000' if exp == 0 else '4'}")
    a(f"s_lshl_b32 s{sT0}, s{sCH}, 8")
    a("s_waitcnt lgkmcnt(0)")
    if npoll == 3:
        poll(sets[1])
    a(f"v_mul_f32 v{vR}, v{vML}, v{vOW}")
    a(f"v_mul_f32 v{vR+1}, v{vML}, v{vOW+1}")
    for w in range(1, NW):
        a(f"v_fmac_f32 v{vR}, v{vML+2*w}, v{vOW+2*w}")
        a(f"v_fmac_f32 v{vR+1}, v{vML+2*w}, v{vOW+2*w+1}")
    a(f"v_mul_f32 v{vU}, v{vXT}, v{vVT}")
    a(f"v_mul_f32 v{vU+1}, v{vXT}, v{vVT+1}")
    a(f"v_add_f32 v{vXT}, v{vXT}, v{vR+2}                ; L0")
    a(f"v_fmac_f32 v{vU}, v{vR+2}, v{vR}                 ; O0 (col 0)")
    a(f"v_fmac_f32 v{vU+1}, v{vR+2}, v{vR+1}             ; O0 (col 1)")
    a(f"v_lshlrev_b32 v{vT+3}, 1, v{vLANE}")
    if npoll > 1:
        poll(sets[-1])
    a("L_poll:")
    a(f"s_sub_u32 s{sCNT}, s{sCNT}, 1")
    a("s_cbranch_scc1 L_giveup")
    for k, g in enumerate(sets):
        a(f"s_waitcnt vmcnt({3 * (npoll - 1)})")
        check(g, f"L_got{k}")
        if sleep:
            a(f"s_sleep {sleep}")
        poll(g)
    a("s_branch L_poll")
    a("L_giveup:")
    a("s_waitcnt vmcnt(0)")
    for k, g in enumerate(sets):
        a(f"L_got{k}:")
        final(g)
        if k < npoll - 1:
            a("s_branch L_fin" if diag else "s_endpgm")
    if diag:
        a("L_fin:")
        st(8)
        a("s_waitcnt lgkmcnt(0) vmcnt(0)")
        if stamp:
            a(f"s_cmp_eq_u32 s{sWAVE}, s{sSPL}")
            a("s_cbranch_scc0 L_end")
            for i in range(9):
                a(f"v_writelane_b32 v2, s{sST+2*i}, {i}")
            a(f"s_mov_b32 s{sT2}, 3")
            a(f"v_writelane_b32 v2, s{sT2}, 9")
            a(f"v_writelane_b32 v2, s{sXCC}, 10")
            a(f"s_lshl_b32 s{sT0}, s2, 6")
            a(f"s_add_u32 s{sT0}, s{sT0}, 0x800000")
            a(f"v_lshlrev_b32 v3, 2, v{vLANE}")
            a("s_mov_b64 exec, 0x7ff")
            a(f"buffer_store_dword v2, v3, s[{sW}:{sW+3}], s{sT0} offen")
        if amp is not None:
            a(f"s_sub_u32 s{sT0}, s{sST+2*amp}, s{sST}")
            a(f"s_mul_i32 s{sT0}, s{sT0}, {ampf}")
            a(f"s_min_u32 s{sT0}, s{sT0}, 100000")
            a("L_spin:")
            a("s_memrealtime s[92:93]")
            a("s_waitcnt lgkmcnt(0)")
            a(f"s_sub_u32 s{sT1}, s92, s{sST+16}")
            a(f"s_cmp_lt_u32 s{sT1}, s{sT0}")
            a("s_cbranch_scc1 L_spin")
    a("s_endpgm")

    a("L_helper:")
    a("s_load_dwordx2 s[20:21], s[0:1], 64")
    if exp == 1:
        a("s_endpgm")
    hA, hB, hC, hV = 12, 28, 44, 48
    a(f"v_mov_b32 v{vT+4}, {XB}")
    a(f"v_mov_b32 v{vT+5}, 0")
    a(f"ds_write_b32 v{vT+4}, v{vT+5} offset:{X_PROG}")
    a(f"v_mov_b32 v{vT+6}, 0x40000000")
    a(f"s_lshl_b32 s{sT1}, s{sPAIR}, 8")
    a(f"v_lshlrev_b32 v{vT+5}, 4, v{vT+1}")
    a(f"v_cmp_eq_u32 vcc, 0, v{vT+2}")
    a(f"v_add_u32 v{vT+5}, s{sT1}, v{vT+5}")
    a(f"s_lshl_b32 s{sT0}, s{sPAIR}, 10")
    a(f"v_cndmask_b32 v{vT+5}, v{vT+6}, v{vT+5}, vcc")
    a(f"v_lshlrev_b32 v{vT+7}, 8, v{vT+2}")
    a(f"v_cmp_gt_u32 vcc, 4, v{vT+2}")
    a(f"v_lshl_add_u32 v{vT+7}, v{vT+1}, 4, v{vT+7}")
    a(f"v_add_u32 v{vT+7}, s{sT0}, v{vT+7}")
    a(f"v_cndmask_b32 v{vT+7}, v{vT+6}, v{vT+7}, vcc     ; q offsets")
    a(f"s_lshr_b32 s{sT2}, s{sPAIR}, 3")
    a(f"s_lshl_b32 s{sT2}, s{sT2}, 1")
    a(f"v_mov_b32 v{vT+8}, s{sT2}")
    a(f"v_lshlrev_b32 v{vT+9}, 1, v{vLANE}                ; lane*2")
    a(f"v_mov_b32 v{vT+4}, 0")
    a(f"s_getreg_b32 s{sXCC}, hwreg(HW_REG_XCC_ID, 0, 4)")
    a(f"s_mov_b32 s{sC}, {f32((128 ** -0.5) * math.log2(math.e))}")
    a("s_waitcnt lgkmcnt(0)")
    srd(sKT, 10, 0x4000)
    srd(sQ, 4, 0x10000)
    srd(sM, 14, 16)
    srd(sVT, 12, 0x4000)
    srd(sW, 20, WS_SIZE)
    srd(sD, 18, 256)
    a(f"s_cmp_eq_u32 s{sCH}, 0")
    a(f"s_cselect_b32 s{sT0}, 0, 0x40000000")
    a(f"v_mov_b32 v{hV+4}, s{sT0}")
    a(f"buffer_load_dword v{hV+2}, v{hV+4}, s[{sW}:{sW+3}], 0 offen offset:12 sc1")
    for j in range(4):
        off = f" offset:{j * 64}" if j else ""
        a(f"buffer_load_dwordx4 v[{hA+4*j}:{hA+4*j+3}], v{vT+5}, s[{sKT}:{sKT+3}], 0 offen{off}")
        a(f"buffer_load_dwordx4 v[{hB+4*j}:{hB+4*j+3}], v{vT+7}, s[{sQ}:{sQ+3}], 0 offen{off}")
    a(f"buffer_load_ushort v{hV}, v{vT+9}, s[{sVT}:{sVT+3}], s{sT1} offen")
    a(f"buffer_load_ushort v{hV+5}, v{vT+9}, s[{sVT}:{sVT+3}], s{sT1} offen offset:128")
    a(f"buffer_load_ushort v{hV+1}, v{vT+8}, s[{sM}:{sM+3}], 0 offen")
    if touchv:
        srd(sV, 8, 0x4000000)
        a(f"s_lshl_b32 s{sT0}, s{sCH}, 18")
        a(f"v_lshlrev_b32 v{hV+6}, {18 - (touchv - 1)}, v{vLANE}")
        a(f"s_mov_b64 exec, {hex((1 << (1 << (touchv - 1))) - 1)}")
        a(f"buffer_load_dword v{hV+7}, v{hV+6}, s[{sV}:{sV+3}], s{sT0} offen nt")
        a("s_mov_b64 exec, -1")
    if toucho:
        srd(sO, 16, 0x10000)
        a(f"s_lshl_b32 s{sT0}, s{sCH}, 8")
        a(f"buffer_load_dword v{hV+8}, v{vT+4}, s[{sO}:{sO+3}], s{sT0} offen")
    a("s_waitcnt vmcnt(0)")
    a(f"v_add_u32 v{hV+2}, 1, v{hV+2}")
    a(f"v_mov_b32 v{hV+3}, 1")
    a("s_mov_b64 exec, 1")
    a(f"buffer_store_dwordx2 v[{hV+2}:{hV+3}], v{hV+4}, s[{sD}:{sD+3}], 0 offen sc1")
    a("s_mov_b64 exec, -1")
    for j in range(4):
        cin = "0" if j == 0 else f"v[{hC}:{hC+3}]"
        a(f"v_mfma_f32_16x16x32_bf16 v[{hC}:{hC+3}], v[{hA+4*j}:{hA+4*j+3}], v[{hB+4*j}:{hB+4*j+3}], {cin}")
    a(f"v_lshlrev_b32 v{vT+9}, 2, v{vLANE}")
    a(f"v_lshlrev_b32 v{hV}, 16, v{hV}")
    a(f"v_lshlrev_b32 v{hV+5}, 16, v{hV+5}")
    a(f"v_add_u32 v{vT+9}, {XB + X_VT}, v{vT+9}")
    a(f"ds_write2st64_b32 v{vT+9}, v{hV}, v{hV+5} offset0:0 offset1:1")
    a(f"v_lshlrev_b32 v{hV+1}, 16, v{hV+1}")
    a(f"v_sub_f32 v{hV+1}, 1.0, v{hV+1}")
    a(f"v_mul_f32 v{hV+1}, {f32(-1e9 * math.log2(math.e))}, v{hV+1}")
    a(f"v_mov_b32 v{vT+7}, {XB}")
    a("s_nop 2")
    a(f"v_readlane_b32 s{sT2}, v{hC}, s{sSPL}")
    a("s_nop 1")
    a(f"v_mov_b32 v{hA}, s{sT2}")
    a(f"v_fma_f32 v{hA}, v{hA}, s{sC}, v{hV+1}")

    def wait_progress(val, lab):
        a(f"s_mov_b32 s{sCNT}, 0x4000")
        a(f"{lab}:")
        a(f"ds_read_b32 v{hA+2}, v{vT+7} offset:{X_PROG}")
        a(f"s_sub_u32 s{sCNT}, s{sCNT}, 1")
        a(f"s_cbranch_scc1 {lab}_ok")
        a("s_waitcnt lgkmcnt(0)")
        a(f"v_readfirstlane_b32 s{sT2}, v{hA+2}")
        a(f"s_sub_u32 s{sT2}, s{sT2}, {hex(val)}")
        a(f"s_cmp_le_u32 s{sT2}, {MAGIC + 2 - val}")
        a(f"s_cbranch_scc1 {lab}_ok")
        a("s_sleep 4")
        a(f"s_branch {lab}")
        a(f"{lab}_ok:")
        a("s_waitcnt lgkmcnt(0)")

    wait_progress(MAGIC, "L_prog1")
    a(f"s_mov_b32 s{sCNT}, 0x40000")
    a("L_tagloop:")
    a(f"buffer_load_dwordx2 v[{hB}:{hB+1}], v{vT+4}, s[{sD}:{sD+3}], 0 offen sc1")
    a(f"s_sub_u32 s{sCNT}, s{sCNT}, 1")
    a("s_cbranch_scc1 L_tagok")
    a("s_waitcnt vmcnt(0)")
    a(f"v_readfirstlane_b32 s{sT2}, v{hB+1}")
    a(f"s_cmp_eq_u32 s{sT2}, 1")
    a("s_cbranch_scc1 L_tagok")
    a("s_sleep 16")
    a("s_branch L_tagloop")
    a("L_tagok:")
    a("s_waitcnt vmcnt(0)")
    a(f"v_mov_b32 v{hA+1}, v{hB}                          ; tag")
    a(f"v_mov_b32 v{hB+2}, s{sXCC}")
    a(f"v_mov_b32 v{hB+3}, v{hB}")
    a(f"s_lshl_b32 s{sT0}, s{sCH}, 7")
    a(f"s_add_u32 s{sT0}, s{sT0}, {hex(XOFF)}")
    a("s_mov_b64 exec, 1")
    a(f"buffer_store_dwordx2 v[{hB+2}:{hB+3}], v{vT+4}, s[{sW}:{sW+3}], s{sT0} offen sc1")
    a("s_mov_b64 exec, -1")
    wait_progress(MAGIC + 1, "L_prog2")
    a(f"s_lshl_b32 s{sT0}, s{sPAIR}, 9")
    a(f"s_add_u32 s{sT0}, s{sT0}, {hex(XOFF)}")
    a(f"v_lshlrev_b32 v{hB+4}, 7, v{vLANE}")
    a(f"s_mov_b32 s{sCNT}, 0x40000")
    a("s_mov_b64 exec, 0xf")
    a("L_dieloop:")
    a(f"buffer_load_dwordx2 v[{hB+6}:{hB+7}], v{hB+4}, s[{sW}:{sW+3}], s{sT0} offen sc1")
    a(f"s_sub_u32 s{sCNT}, s{sCNT}, 1")
    a("s_cbranch_scc1 L_dieok")
    a("s_waitcnt vmcnt(0)")
    a(f"v_cmp_ne_u32 vcc, v{hB+7}, v{hA+1}")
    a("s_cbranch_vccz L_dieok")
    a("s_sleep 16")
    a("s_branch L_dieloop")
    a("L_dieok:")
    a("s_waitcnt vmcnt(0)")
    a(f"v_lshlrev_b32 v{hB+5}, 3, v{vLANE}")
    a(f"v_add_u32 v{hB+5}, {XB + X_XCC}, v{hB+5}")
    a(f"ds_write_b32 v{hB+5}, v{hB+6}")
    a("s_mov_b64 exec, 1")
    a(f"ds_write_b64 v{vT+7}, v[{hA}:{hA+1}]")
    a("s_mov_b64 exec, -1")
    if warm:
        a("; bring this workgroup's inbox lines into its L2 shortly before the messages arrive")
        wait_progress(MAGIC + 2, "L_prog3")
        a(f"s_lshl_b32 s{sMSG}, s{sCH}, 12")
        a(f"v_lshlrev_b32 v{vT+4}, 4, v{vLANE}")
        for j in range(3):
            off = f" offset:{j * 1024}" if j else ""
            a(f"buffer_load_dwordx4 v[{hB+4*j}:{hB+4*j+3}], v{vT+4}, s[{sW}:{sW+3}], s{sMSG} offen{off} {warmpol}")
        a("s_waitcnt vmcnt(0)")
    a("s_waitcnt lgkmcnt(0)")
    a("L_end:")
    a("s_endpgm")
    a('.section .rodata,"a"')
    a(".p2align 6")
    a(f".amdhsa_kernel {label}")
    a(f"  .amdhsa_next_free_vgpr {NV}")
    a("  .amdhsa_next_free_sgpr 96")
    a(f"  .amdhsa_accum_offset {NV}")
    a("  .amdhsa_group_segment_fixed_size 0")
    a("  .amdhsa_kernarg_size 72")
    a("  .amdhsa_user_sgpr_count 2")
    a("  .amdhsa_user_sgpr_kernarg_segment_ptr 1")
    a("  .amdhsa_system_sgpr_workgroup_id_x 1")
    a("  .amdhsa_float_denorm_mode_32 3")
    a(".end_amdhsa_kernel")
    return a.text(), (NW + 1) * 64, LDS


if __name__ == "__main__":
    import argparse
    ap = argparse.ArgumentParser()
    ap.add_argument("-o", default="/dev/stdout")
    ap.add_argument("--nslot", type=int, default=2)
    ap.add_argument("--nt", type=int, default=1)
    ap.add_argument("--xcd", type=int, default=1)
    ap.add_argument("--stamp", type=int, default=0)
    ap.add_argument("--amp", type=int, default=None)
    ap.add_argument("--ampf", type=int, default=10)
    ap.add_argument("--fast", type=int, default=1)
    ap.add_argument("--warm", type=int, default=0)
    ap.add_argument("--sleep", type=int, default=0)
    ap.add_argument("--prio", type=int, default=0)
    ap.add_argument("--prog1", type=int, default=8)
    ap.add_argument("--prog2", type=int, default=6)
    ap.add_argument("--npoll", type=int, default=1)
    ap.add_argument("--touchv", type=int, default=0)
    ap.add_argument("--toucho", type=int, default=0)
    ap.add_argument("--warmpol", default="sc1")
    ap.add_argument("--pollpol", default="sc1")
    ap.add_argument("--nearpol", default="")
    ap.add_argument("--outpol", default="")
    ap.add_argument("--early", type=int, default=0)
    ap.add_argument("--exp", type=int, default=0)
    args = ap.parse_args()
    t, b, l = gen(args.nslot, bool(args.nt), bool(args.xcd), stamp=bool(args.stamp), amp=args.amp, ampf=args.ampf,
                  fast=args.fast, warm=args.warm, sleep=args.sleep, prio=args.prio, exp=args.exp, prog1=args.prog1, prog2=args.prog2, npoll=args.npoll, touchv=args.touchv, toucho=args.toucho, warmpol=args.warmpol.replace("_", " "), pollpol=args.pollpol.replace("_", " "), nearpol=args.nearpol.replace("_", " "), outpol=args.outpol.replace("_", " "), early=args.early)
    open(args.o, "w").write(t)
    print(f"256,{b},{l}")
```
